```python
import torch

def _softmax(x, axis=-1):
    return torch.softmax(x, dim=axis)

def _gelu(x):
    return torch.nn.functional.gelu(x, approximate='tanh')

def _silu(x):
    return torch.nn.functional.silu(x)

def _sigmoid(x):
    return torch.sigmoid(x)

def _layernorm(x, axis=-1, eps=1e-05):
    m = x.mean(dim=axis, keepdim=True)
    v = x.var(dim=axis, keepdim=True, unbiased=False)
    return (x - m) / torch.sqrt(v + eps)

def _scatter_add(tgt, idx, src, axis=0):
    return tgt.clone().index_add_(axis, idx, src)

def _segment_sum(src, seg, n):
    out = torch.zeros((n,) + src.shape[1:], dtype=src.dtype)
    return out.index_add_(0, seg, src)

def _pad(x, pw):
    flat = tuple((v for pair in reversed(pw) for v in pair))
    return torch.nn.functional.pad(x, flat)
kernel_name = 'adaLN_cond__ssm_conv_s4__dense_activation_squared_relu__prompt'

def setup_inputs():

    _w = lambda a: (lambda t: t.to(torch.bfloat16) if t.is_floating_point() else t)(torch.as_tensor(a))

    def _A_setup():
        B, L, D, N = (1, 2048, 512, 128)
        A_re = -(lambda _x: torch.exp(torch.as_tensor(_x)))((lambda *s: torch.randn(*s, dtype=torch.bfloat16) * 12.8)(D, N))
        A_im = torch.pi * (lambda *s: torch.randn(*s, dtype=torch.bfloat16) * 0.1)(D, N)
        B_re = (lambda *s: torch.randn(*s, dtype=torch.bfloat16) * 0.2)(D, N)
        B_im = (lambda *s: torch.randn(*s, dtype=torch.bfloat16) * 0.2)(D, N)
        C_re = (lambda *s: torch.randn(*s, dtype=torch.bfloat16) * 0.2)(D, N)
        C_im = (lambda *s: torch.randn(*s, dtype=torch.bfloat16) * 0.2)(D, N)
        log_dt = (lambda *s: torch.randn(*s, dtype=torch.bfloat16) * 0.1)(D) * 0.5 - 4.0
        Dskip = (lambda *s: torch.randn(*s, dtype=torch.bfloat16) * 0.1)(D)
        return {'u': _w((lambda *s: torch.randn(*s, dtype=torch.bfloat16) * 0.05)(B, L, D)), 'A_re': _w(A_re), 'A_im': _w(A_im), 'B_re': _w(B_re), 'B_im': _w(B_im), 'C_re': _w(C_re), 'C_im': _w(C_im), 'log_dt': _w(log_dt), 'Dskip': _w(Dskip)}
    _A_in = _A_setup()

    def _B_setup():
        B, S, D, F = (1, 2048, 512, 1792)
        return {'x': _w((lambda *s: torch.randn(*s, dtype=torch.bfloat16) * 0.05)(B, S, D)), 'w1': _w((lambda *s: torch.randn(*s, dtype=torch.bfloat16) * 0.05)(D, F)), 'b1': _w((lambda *s: torch.randn(*s, dtype=torch.bfloat16) * 1.6)(F)), 'w2': _w((lambda *s: torch.randn(*s, dtype=torch.bfloat16) * 0.05)(F, D)), 'b2': _w((lambda *s: torch.randn(*s, dtype=torch.bfloat16) * 12.8)(D))}
    _B_in = _B_setup()
    return {'A_u': _A_in['u'], 'A_A_re': _A_in['A_re'], 'A_A_im': _A_in['A_im'], 'A_B_re': _A_in['B_re'], 'A_B_im': _A_in['B_im'], 'A_C_re': _A_in['C_re'], 'A_C_im': _A_in['C_im'], 'A_log_dt': _A_in['log_dt'], 'A_Dskip': _A_in['Dskip'], 'B_x': _B_in['x'], 'B_w1': _B_in['w1'], 'B_b1': _B_in['b1'], 'B_w2': _B_in['w2'], 'B_b2': _B_in['b2'], 'c': _w((lambda *s: torch.randn(*s, dtype=torch.bfloat16) * 0.2)(1, 512) * 8.0), 'w_mod': _w((lambda *s: torch.randn(*s, dtype=torch.bfloat16) * 0.2)(512, 6 * 512) * 512 ** (-0.5) * 8.0)}

def reference(A_u, A_A_re, A_A_im, A_B_re, A_B_im, A_C_re, A_C_im, A_log_dt, A_Dskip, B_x, B_w1, B_b1, B_w2, B_b2, c, w_mod):

    def _A_ref(u, A_re, A_im, B_re, B_im, C_re, C_im, log_dt, Dskip):
        Bsz, L, D = u.shape
        dt = torch.exp(log_dt)[:, None]
        A = A_re + 1j * A_im
        Bc = B_re + 1j * B_im
        Cc = C_re + 1j * C_im
        logdA = dt * A
        dB = dt * Bc
        l = (lambda x, dt: x.to(dt))(torch.arange(L), A_re.dtype)
        P = torch.exp(logdA[:, :, None] * l[None, None, :])
        K = torch.einsum('dn,dnl,dn->dl', Cc, P, dB).real
        L2 = 2 * L
        Kp = _pad(K, ((0, 0), (0, L)))
        up = (lambda x, *d: x.permute(*d))(u, 0, 2, 1)
        up = _pad(up, ((0, 0), (0, 0), (0, L)))
        Kf = (lambda x, axes=(-2, -1): torch.fft.rfft2(x.float(), dim=axes))(Kp[:, None, :], axes=(-2, -1))
        Uf = (lambda x, axes=(-2, -1): torch.fft.rfft2(x.float(), dim=axes))(up[:, :, None, :], axes=(-2, -1))
        Yf = Uf * Kf[None, :, :, :]
        y = (lambda x, s, axes=(-2, -1): torch.fft.irfft2(x, s=s, dim=axes).to(torch.bfloat16))(Yf, (1, L2), axes=(-2, -1))[:, :, 0, :L]
        y = (lambda x, *d: x.permute(*d))(y, 0, 2, 1) + u * Dskip[None, None, :]
        return y

    def _B_ref(x, w1, b1, w2, b2):
        h = torch.einsum('bsd,df->bsf', x, w1) + b1
        zero = torch.zeros_like(h)
        r = torch.where(h > zero, h, zero)
        h = r * r
        out = torch.einsum('bsf,fd->bsd', h, w2) + b2
        return out
    x = A_u
    mod = (_silu(c) @ w_mod).reshape(c.shape[0], 6, 1, -1)
    sa, ca, ga, sb, cb, gb = (mod[:, 0].clone(), mod[:, 1].clone(), mod[:, 2].clone(), mod[:, 3].clone(), mod[:, 4].clone(), mod[:, 5].clone())
    h = _layernorm(x, axis=-1) * (1 + ca) + sa
    x = x + ga * _A_ref(h, A_A_re, A_A_im, A_B_re, A_B_im, A_C_re, A_C_im, A_log_dt, A_Dskip)
    h = _layernorm(x, axis=-1) * (1 + cb) + sb
    x = x + gb * _B_ref(h, B_w1, B_b1, B_w2, B_b2)
    return x
```

```python
import os
STAMP=int(os.environ.get('STAMP','0'))
NAME = "adaLN_cond__ssm_conv_s4__dense_activation_squared_relu__prompt"
XT=0x1800000; MODP=0x210000; RV=0x300000; RVS=4224
X2T=0x2000000; X2S=4352; XTS=16640; ROT3=int(os.environ.get('ROT3','0')); ROT4=int(os.environ.get('ROT4','0')); W1F=0x800000; W2F=0xA00000; CSB=0xC00000; HID=0x1000000
WS_SIZE=268435456
KA=dict(x=0,Are=8,Aim=16,Bre=24,Bim=32,Cre=40,Cim=48,ldt=56,Dsk=64,w1=80,b1=88,w2=96,b2=104,c=112,wmod=120,out=128,dbg=136,ws=144)
class Asm:
    def __init__(s): s.l=[]
    def __call__(s,t):
        for x in t.strip('\n').split('\n'): s.l.append('    '+x.strip() if not x.strip().endswith(':') else x.strip())
    def srd(s, d, name, size, off=0):
        s(f"s_load_dwordx2 s[{d}:{d+1}], s[0:1], {KA[name]}")
        s.pend=getattr(s,'pend',[])+[(d,size,off)]
    def srd_fin(s):
        s("s_waitcnt lgkmcnt(0)")
        for d,size,off in s.pend:
            if off:
                s(f"s_add_u32 s{d}, s{d}, {hex(off)}")
                s(f"s_addc_u32 s{d+1}, s{d+1}, 0")
            s(f"s_and_b32 s{d+1}, s{d+1}, 0xffff")
            s(f"s_mov_b32 s{d+2}, {hex(size)}")
            s(f"s_mov_b32 s{d+3}, 0x00020000")
        s.pend=[]
    def stamp(s,i):
        if STAMP: s(f"s_memtime s[{64+2*i}:{65+2*i}]")
    def stamp_end(s,kid,n):
        if not STAMP: return
        s.stamp(n); s("s_memrealtime s[90:91]\n s_mov_b64 exec, -1")
        s(f"s_load_dwordx2 s[84:85], s[0:1], 144\n s_waitcnt lgkmcnt(0)\n s_add_u32 s84, s84, {0x3000000+kid*0x100000}\n s_addc_u32 s85, s85, 0\n s_and_b32 s85, s85, 0xffff\n s_mov_b32 s86, 0x100000\n s_mov_b32 s87, 0x20000")
        s("v_lshrrev_b32 v1, 6, v0\n v_lshlrev_b32 v1, 6, v1\n s_lshl_b32 s88, s2, 10")
        for i in range(n+1): s(f"v_mov_b32 v2, s{64+2*i}\n buffer_store_dword v2, v1, s[84:87], s88 offen offset:{4*i}")
        s(f"v_mov_b32 v2, s90\n buffer_store_dword v2, v1, s[84:87], s88 offen offset:60")
    def begin(s,k):
        s.l += [f".globl {k}", ".p2align 8", f".type {k},@function", f"{k}:"]
    def text(s): return '\n'.join(s.l)+'\n'
def desc(k, vgpr, agpr=0, sgpr=96):
    acc=(vgpr+3)//4*4
    return f""".p2align 6
.amdhsa_kernel {k}
  .amdhsa_next_free_vgpr {acc+agpr if agpr else vgpr}
  .amdhsa_next_free_sgpr {sgpr}
  .amdhsa_accum_offset {acc}
  .amdhsa_group_segment_fixed_size 0
  .amdhsa_kernarg_size 152
  .amdhsa_user_sgpr_count 2
  .amdhsa_user_sgpr_kernarg_segment_ptr 1
  .amdhsa_system_sgpr_workgroup_id_x 1
.end_amdhsa_kernel
"""
def rowsum16(a, regs):
    for sh in (8,4,2,1):
        if len(regs)<3: a("s_nop 1")
        for r in regs: a(f"v_add_f32_dpp v{r}, v{r}, v{r} row_ror:{sh} row_mask:0xf bank_mask:0xf")
def wavesum(a, regs, sb):
    rowsum16(a, regs)
    a("s_nop 1")
    for i,r in enumerate(regs):
        for j in range(4): a(f"v_readlane_b32 s{sb+4*i+j}, v{r}, {16*j}")
    a("s_nop 1")
    for i,r in enumerate(regs):
        a(f"v_mov_b32 v{r}, s{sb+4*i}")
        for j in range(1,4): a(f"v_add_f32 v{r}, s{sb+4*i+j}, v{r}")

W2AT=int(os.environ.get('W2AT','2'))
FUSE=int(os.environ.get('FUSE','1'))
W2SZ=1835008
```

```python
from common import *
from k2 import rnd, w2relayout
NLN=128; NMOD=192; NW2=64 if W2AT==1 else 0; NKG=512
K1_GRID=NLN+NMOD+NW2+NKG
K1_LDS=36864
import os
ORD1=int(os.environ.get('ORD1','1')); PRIO1=int(os.environ.get('PRIO1','0'))
def k1(a):
    a.begin("k1_kernel")
    a(f"""
    s_cmp_ge_u32 s2, {K1_GRID}
    s_cbranch_scc1 K1_END
    v_and_b32 v1, 63, v0
    v_lshrrev_b32 v2, 6, v0
    """)
    if ORD1==0:
        a(f"""
    s_mov_b32 s3, s2
    s_cmp_lt_u32 s2, {NKG}
    s_cbranch_scc1 K1_KG
    s_sub_u32 s2, s2, {NKG}
    """)
    else:
        a(f"""
    s_cmp_lt_u32 s2, {NLN}
    s_cbranch_scc1 K1_LN
    s_sub_u32 s3, s2, {NLN}
    s_cmp_lt_u32 s3, {NKG}
    s_cbranch_scc1 K1_KG0
    s_sub_u32 s2, s2, {NKG}
    """)
    a(f"""
    s_cmp_ge_u32 s2, {NLN+NMOD}
    s_cbranch_scc1 K1_W2
    s_cmp_ge_u32 s2, {NLN}
    s_cbranch_scc1 K1_MOD
    K1_LN:
    """)
    if PRIO1: a("s_setprio 3")
    a("""
    """)
    a.stamp(0)
    a.srd(4,'x',2097152); a.srd(8,'ws',256*XTS,XT); a.srd_fin()
    a("""
    s_lshl_b32 s3, s2, 14
    v_lshlrev_b32 v3, 12, v2
    v_lshl_add_u32 v3, v1, 4, v3
    """)
    for r in range(4): a(f"buffer_load_dwordx4 v[{4+4*r}:{7+4*r}], v3, s[4:7], s3 offen offset:{1024*r}")
    a(f"""
    s_lshl_b32 s16, s2, 7
    v_mul_u32_u24 v3, 576, v1
    v_lshl_add_u32 v3, v2, 5, v3
    s_mov_b32 s17, 0xffff0000
    v_lshrrev_b32 v80, 3, v0
    v_mov_b32 v84, 0x3f803f80
    v_mov_b32 v36, 0
    v_mov_b32 v37, 0
    v_mov_b32 v38, 0
    v_mov_b32 v39, 0
    v_mov_b32 v72, 0
    v_mov_b32 v73, 0
    v_mov_b32 v74, 0
    v_mov_b32 v75, 0
    v_and_b32 v81, 7, v0
    v_mul_u32_u24 v82, 144, v80
    v_lshl_add_u32 v82, v81, 4, v82
    v_mul_u32_u24 v83, {XTS}, v80
    v_lshl_add_u32 v83, v81, 4, v83
    s_waitcnt vmcnt(0)
    """)
    a.stamp(1)
    for j in range(4):
        for r in range(4): a(f"v_dot2c_f32_bf16 v{36+r}, v{4+4*r+j}, v84\n v_dot2c_f32_bf16 v{72+r}, v{4+4*r+j}, v{4+4*r+j}")
    for r in range(4):
        for j in range(4):
            a(f"v_lshlrev_b32 v{40+8*r+2*j}, 16, v{4+4*r+j}")
            a(f"v_and_b32 v{41+8*r+2*j}, s17, v{4+4*r+j}")
    wavesum(a,[36,37,38,39,72,73,74,75],20)
    for r in range(4): a(f"v_mul_f32 v{36+r}, 0x3b000000, v{36+r}\n v_mul_f32 v{72+r}, 0x3b000000, v{72+r}")
    for r in range(4): a(f"v_fma_f32 v{72+r}, -v{36+r}, v{36+r}, v{72+r}")
    for r in range(4): a(f"v_max_f32 v{72+r}, 0, v{72+r}")
    for r in range(4): a(f"v_cvt_pk_bf16_f32 v{36+r}, v{36+r}, v{72+r}")
    for r in range(4): a(f"v_and_b32 v{72+r}, s17, v{36+r}\n v_lshlrev_b32 v{36+r}, 16, v{36+r}")
    for r in range(4): a(f"v_add_f32 v{72+r}, 0x3727c5ac, v{72+r}")
    for r in range(4): a(f"v_cvt_pk_bf16_f32 v{72+r}, v{72+r}, v{72+r}")
    for r in range(4): a(f"v_lshlrev_b32 v{72+r}, 16, v{72+r}")
    for r in range(4): a(f"v_sqrt_f32 v{72+r}, v{72+r}")
    for r in range(4): a(f"v_cvt_pk_bf16_f32 v{72+r}, v{72+r}, v{72+r}")
    for r in range(4): a(f"v_lshlrev_b32 v{72+r}, 16, v{72+r}")
    for r in range(4): a(f"v_rcp_f32 v{72+r}, v{72+r}")
    for r in range(4):
        for e in range(0,8,2): a(f"v_pk_add_f32 v[{40+8*r+e}:{41+8*r+e}], v[{40+8*r+e}:{41+8*r+e}], v[{36+(r&2)}:{37+(r&2)}] op_sel:[0,{r&1}] op_sel_hi:[1,{r&1}] neg_lo:[0,1] neg_hi:[0,1]")
    rnd(a,list(range(40,72)))
    for j in range(4):
        for r in range(4):
            a(f"v_pk_mul_f32 v[{40+8*r+2*j}:{41+8*r+2*j}], v[{40+8*r+2*j}:{41+8*r+2*j}], v[{72+(r&2)}:{73+(r&2)}] op_sel:[0,{r&1}] op_sel_hi:[1,{r&1}]")
        B=20+8*(j&1)
        for r in range(4): a(f"v_cvt_pk_bf16_f32 v{B+2*r+1}, v{40+8*r+2*j}, v{41+8*r+2*j}\n v_mov_b32 v{B+2*r}, v{4+4*r+j}")
        a(f"ds_write_b128 v3, v[{B}:{B+3}] offset:{144*j}\n ds_write_b128 v3, v[{B+4}:{B+7}] offset:{144*j+16}")
    a("s_waitcnt lgkmcnt(0)\n s_barrier")
    for i in range(8): a(f"ds_read_b128 v[{40+4*i}:{43+4*i}], v82 offset:{32*144*i}")
    for i in range(8):
        a(f"s_waitcnt lgkmcnt({7-i})\n buffer_store_dwordx4 v[{40+4*i}:{43+4*i}], v83, s[8:11], s16 offen\n s_add_u32 s16, s16, {32*XTS}")
    a.stamp(2); a("s_waitcnt vmcnt(0)") if STAMP else 0; a.stamp_end(4,3); a("s_endpgm")
    a("K1_W2:"); w2relayout(a, NLN+NMOD) if W2AT==1 else a("s_endpgm")
    a("K1_MOD:")
    a.srd(4,'wmod',3145728); a.srd(8,'c',1024); a.srd(12,'ws',49152,MODP); a.srd_fin()
    a(f"""
    s_sub_u32 s3, s2, {NLN}
    s_and_b32 s16, s3, 3
    s_lshr_b32 s17, s3, 2
    v_and_b32 v3, 7, v0
    v_lshrrev_b32 v4, 3, v0
    s_lshl_b32 s18, s16, 7
    v_add_u32 v5, s18, v4
    v_lshlrev_b32 v6, 1, v5
    v_mul_u32_u24 v5, 6144, v5
    v_lshl_add_u32 v5, v3, 4, v5
    s_lshl_b32 s19, s17, 7
    s_mov_b32 s21, 0xffff0000
    """)
    for i in range(4): a(f"buffer_load_ushort v{8+i}, v6, s[8:11], 0 offen offset:{64*i}")
    for i in range(4):
        a(f"buffer_load_dwordx4 v[{12+4*i}:{15+4*i}], v5, s[4:7], s19 offen")
        if i<3: a(f"s_add_u32 s19, s19, {32*6144}")
    a("s_waitcnt vmcnt(4)")
    for i in range(4): a(f"v_lshlrev_b32 v{8+i}, 16, v{8+i}")
    for i in range(4): a(f"v_mul_f32 v{28+i}, 0xbfb8aa3b, v{8+i}")
    for i in range(4): a(f"v_exp_f32 v{28+i}, v{28+i}")
    for i in range(4): a(f"v_add_f32 v{28+i}, 1.0, v{28+i}")
    for i in range(4): a(f"v_rcp_f32 v{28+i}, v{28+i}")
    for i in range(4): a(f"v_mul_f32 v{8+i}, v{8+i}, v{28+i}")
    for i in range(4): a(f"v_cvt_pk_bf16_f32 v{8+i}, v{8+i}, v{8+i}")
    for i in range(4): a(f"v_lshlrev_b32 v{8+i}, 16, v{8+i}")
    for e in range(8): a(f"v_mov_b32 v{32+e}, 0")
    for i in range(4):
        a(f"s_waitcnt vmcnt({3-i})")
        for j in range(4):
            a(f"v_lshlrev_b32 v28, 16, v{12+4*i+j}")
            a(f"v_and_b32 v29, s21, v{12+4*i+j}")
            a(f"v_fmac_f32 v{32+2*j}, v{8+i}, v28")
            a(f"v_fmac_f32 v{33+2*j}, v{8+i}, v29")
    a("""
    v_mul_u32_u24 v5, 272, v4
    v_lshl_add_u32 v5, v3, 5, v5
    ds_write_b128 v5, v[32:35]
    ds_write_b128 v5, v[36:39] offset:16
    v_mul_u32_u24 v6, 2176, v2
    v_lshl_add_u32 v6, v1, 2, v6
    s_waitcnt lgkmcnt(0)
    s_barrier
    """)
    for i in range(8): a(f"ds_read_b32 v{8+i}, v6 offset:{272*i}")
    a("s_waitcnt lgkmcnt(0)")
    for i in range(1,8): a(f"v_add_f32 v8, v8, v{8+i}")
    a("""
    v_lshlrev_b32 v6, 2, v0
    ds_write_b32 v6, v8 offset:8704
    v_lshlrev_b32 v6, 2, v1
    s_waitcnt lgkmcnt(0)
    s_barrier
    """)
    for i in range(4): a(f"ds_read_b32 v{8+i}, v6 offset:{8704+256*i}")
    a("""
    s_and_b32 s18, s17, 7
    s_mul_i32 s18, s18, 6144
    s_lshr_b32 s19, s17, 3
    s_lshl_b32 s19, s19, 4
    s_add_u32 s18, s18, s19
    s_lshl_b32 s19, s16, 2
    s_add_u32 s18, s18, s19
    v_mul_u32_u24 v7, 96, v1
    s_waitcnt lgkmcnt(0)
    v_add_f32 v8, v8, v9
    v_add_f32 v10, v10, v11
    v_add_f32 v8, v8, v10
    v_cmp_gt_u32 vcc, 64, v0
    s_and_saveexec_b64 s[22:23], vcc
    s_cbranch_execz K1_END
    buffer_store_dword v8, v7, s[12:15], s18 offen
    s_endpgm
    """)
    a("K1_KG0:\n s_mov_b32 s2, s3\n K1_KG:"); a.stamp(0)
    a("s_load_dwordx16 s[4:19], s[0:1], 0"); a.srd(32,'ws',512*RVS,RV)
    a(f"""
    s_lshl_b32 s36, s3, 8
    s_lshl_b32 s37, s3, 1
    v_and_b32 v3, 127, v0
    v_lshl_add_u32 v4, v3, 1, s36
    v_mov_b32 v5, s37
    s_waitcnt lgkmcnt(0)
    """)
    for i in range(6): a(f"global_load_ushort v{8+i}, v4, s[{6+2*i}:{7+2*i}]")
    a("global_load_ushort v14, v5, s[18:19]"); a.srd_fin()
    TOFF=18432; a.stamp(1)
    a("v_lshlrev_b32 v6, 3, v0\n v_sub_u32 v6, 2047, v6")
    for e in range(8): a(f"v_subrev_u32 v{80+e}, {e}, v6")
    for e in range(8): a(f"v_cvt_f32_u32 v{88+e}, v{80+e}")
    for e in range(8): a(f"v_cvt_pk_bf16_f32 v{88+e}, v{88+e}, v{88+e}")
    for e in range(8): a(f"v_and_b32 v{88+e}, 0xffff, v{88+e}")
    for e in range(8): a(f"v_subrev_u32 v{88+e}, {0x4300-128}, v{88+e}")
    a("v_cmp_lt_u32 vcc, 127, v6\n s_nop 1")
    for e in range(8): a(f"v_cndmask_b32 v{80+e}, v{80+e}, v{88+e}, vcc")
    for e in range(8): a(f"v_lshlrev_b32 v{80+e}, 1, v{80+e}")
    a("""
    v_and_b32 v6, 15, v1
    v_cvt_f32_u32 v6, v6
    v_lshrrev_b32 v7, 4, v1
    v_lshlrev_b32 v7, 6, v7
    v_lshl_add_u32 v7, v2, 9, v7
    s_waitcnt vmcnt(0)
    """)
    a.stamp(2)
    for i in range(7): a(f"v_lshlrev_b32 v{8+i}, 16, v{8+i}")
    a("""
    v_mul_f32 v14, 0x3fb8aa3b, v14
    v_exp_f32 v14, v14
    s_nop 0
    v_cvt_pk_bf16_f32 v14, v14, v14
    v_lshlrev_b32 v14, 16, v14
    v_mul_f32 v16, v14, v8
    v_mul_f32 v17, v14, v9
    v_mul_f32 v10, v14, v10
    v_mul_f32 v11, v14, v11
    v_mul_f32 v16, 0x3fb8aa3b, v16
    v_mul_f32 v17, 0.15915494, v17
    v_mul_f32 v18, v12, v10
    v_mul_f32 v19, v12, v11
    v_fma_f32 v18, -v13, v11, v18
    v_fma_f32 v19, v13, v10, v19
    v_lshlrev_b32 v4, 4, v3
    ds_write_b128 v4, v[16:19]
    v_mov_b32 v96, v16
    v_mov_b32 v97, v17
    v_mov_b32 v98, v18
    v_mov_b32 v99, v19
    s_waitcnt lgkmcnt(0)
    s_barrier
    """)
    a.stamp(3)
    for m in range(8): a(f"ds_read_b128 v[{8+4*m}:{11+4*m}], v7 offset:{(m>>2)*256+(m&3)*16}")
    a("""
    v_mul_f32 v100, 0x45000000, v96
    v_mul_f32 v101, 0x45000000, v97
    v_exp_f32 v100, v100
    v_fract_f32 v101, v101
    v_cos_f32 v102, v101
    v_sin_f32 v101, v101
    s_nop 0
    v_mul_f32 v102, v98, v102
    v_fma_f32 v102, -v99, v101, v102
    v_mul_f32 v102, v100, v102
    """)
    wavesum(a,[102],40)
    a(f"v_lshlrev_b32 v4, 2, v2\n ds_write_b32 v4, v102 offset:{TOFF+1536}")
    for ks in range(2):
        a(f"s_waitcnt lgkmcnt({1-ks})")
        M=[8+16*ks+4*u for u in range(4)]; T=[72,76,88,92]
        for u in range(4): a(f"v_pk_mul_f32 v[{T[u]}:{T[u]+1}], v[{M[u]}:{M[u]+1}], v[6:7] op_sel_hi:[1,0]")
        for u in range(4): a(f"v_exp_f32 v{T[u]}, v{T[u]}\n v_fract_f32 v{T[u]+1}, v{T[u]+1}")
        for u in range(4): a(f"v_cos_f32 v{T[u]+2}, v{T[u]+1}\n v_sin_f32 v{T[u]+3}, v{T[u]+1}")
        for u in range(4): a(f"v_pk_mul_f32 v[{T[u]}:{T[u]+1}], v[{T[u]+2}:{T[u]+3}], v[{T[u]}:{T[u]+1}] op_sel_hi:[1,0]")
        for st in range(8):
            if st<4:
                for u in range(4): a(f"v_cvt_pk_bf16_f32 v{40+4*st+u}, v{T[u]}, v{T[u]+1}")
            else:
                for u in range(4): a(f"v_pk_mul_f32 v[{T[u]+2}:{T[u]+3}], v[{M[u]+2}:{M[u]+3}], v[{T[u]}:{T[u]+1}] op_sel_hi:[0,1]")
                for u in range(4): a(f"v_pk_fma_f32 v[{T[u]+2}:{T[u]+3}], v[{M[u]+2}:{M[u]+3}], v[{T[u]}:{T[u]+1}], v[{T[u]+2}:{T[u]+3}] op_sel:[1,1,0] op_sel_hi:[1,0,1] neg_lo:[0,1,0]")
                for u in range(4): a(f"v_cvt_pk_bf16_f32 v{56+4*(st-4)+u}, v{T[u]+2}, -v{T[u]+3}")
            if st<7:
                for u in range(4): a(f"v_pk_mul_f32 v[{T[u]+2}:{T[u]+3}], v[{T[u]}:{T[u]+1}], v[{T[u]}:{T[u]+1}] op_sel_hi:[0,1]")
                for u in range(4): a(f"v_pk_fma_f32 v[{T[u]}:{T[u]+1}], v[{T[u]}:{T[u]+1}], v[{T[u]}:{T[u]+1}], v[{T[u]+2}:{T[u]+3}] op_sel:[1,1,0] op_sel_hi:[1,0,1] neg_lo:[0,1,0]")
        a("s_nop 1")
        for s in range(4):
            c = "0" if ks==0 else f"v[{96+4*s}:{99+4*s}]"
            a(f"v_mfma_f32_16x16x32_bf16 v[{96+4*s}:{99+4*s}], v[{40+4*s}:{43+4*s}], v[{56+4*s}:{59+4*s}], {c}")
    a(f"""
    v_and_b32 v4, 15, v1
    v_lshlrev_b32 v4, 6, v4
    v_lshrrev_b32 v5, 4, v1
    v_lshl_add_u32 v4, v5, 4, v4
    v_lshl_add_u32 v4, v2, 12, v4
    v_lshlrev_b32 v5, 4, v0
    s_nop 4
    """)
    a.stamp(4)
    for s in range(4): a(f"ds_write_b128 v4, v[{96+4*s}:{99+4*s}] offset:{2048+1024*s}")
    a("s_waitcnt lgkmcnt(0)\n s_barrier")
    for w in range(4): a(f"ds_read_b128 v[{8+4*w}:{11+4*w}], v5 offset:{2048+4096*w}")
    a(f"v_mov_b32 v26, 0\n ds_read_b64 v[24:25], v26 offset:{TOFF+1536}")
    a(f"""
    v_lshlrev_b32 v4, 3, v1
    v_lshl_add_u32 v4, v2, 8, v4
    v_cmp_gt_u32 vcc, 64, v0
    v_cmp_lt_u32 s[40:41], 31, v1
    s_or_b64 vcc, vcc, s[40:41]
    s_waitcnt lgkmcnt(0)
    """)
    for e in range(4): a(f"v_add_f32 v{8+e}, v{8+e}, v{12+e}\n v_add_f32 v{16+e}, v{16+e}, v{20+e}")
    for e in range(4): a(f"v_add_f32 v{8+e}, v{8+e}, v{16+e}")
    a(f"""
    v_add_f32 v24, v24, v25
    v_cvt_pk_bf16_f32 v8, v8, v9
    v_cvt_pk_bf16_f32 v9, v10, v11
    v_cvt_pk_bf16_f32 v24, v24, v24
    ds_write_b32 v26, v24 offset:{TOFF+1280}
    s_and_saveexec_b64 s[42:43], vcc
    ds_write_b64 v4, v[8:9] offset:{TOFF}
    s_mov_b64 exec, s[42:43]
    s_waitcnt lgkmcnt(0)
    s_barrier
    """)
    a.stamp(5)
    for e in range(8): a(f"ds_read_u16 v{16+e}, v{80+e} offset:{TOFF}")
    a(f"""
    s_mul_i32 s36, s3, {RVS}
    v_mov_b32 v12, 0
    v_mov_b32 v13, 0
    v_mov_b32 v14, 0
    v_mov_b32 v15, 0
    s_waitcnt lgkmcnt(0)
    v_lshl_or_b32 v8, v17, 16, v16
    v_lshl_or_b32 v9, v19, 16, v18
    v_lshl_or_b32 v10, v21, 16, v20
    v_lshl_or_b32 v11, v23, 16, v22
    buffer_store_dwordx4 v[8:11], v5, s[32:35], s36 offen
    """)
    a.stamp(6); a("s_waitcnt vmcnt(0)") if STAMP else 0; a.stamp_end(0,7)
    a(f"""
    v_cmp_gt_u32 vcc, 8, v0
    s_and_saveexec_b64 s[42:43], vcc
    s_cbranch_execz K1_END
    s_add_u32 s36, s36, 4096
    buffer_store_dwordx4 v[12:15], v5, s[32:35], s36 offen
    K1_END:
    s_endpgm
    """)
    return desc("k1_kernel",112)
```

```python
from common import *
NCV=256; NW1=112
K2_GRID=NCV+NW1
CPS=4416
H1=4*CPS
H2=H1+6912
CH=H2+5120
K2_LDS=2*CH
def rnd(a, regs, tmp=None):
    for i in range(0,len(regs),2): a(f"v_cvt_pk_bf16_f32 v{regs[i]}, v{regs[i]}, v{regs[i+1]}")
    for i in range(0,len(regs),2):
        a(f"v_and_b32 v{regs[i+1]}, s17, v{regs[i]}"); a(f"v_lshlrev_b32 v{regs[i]}, 16, v{regs[i]}")
def k2(a):
    a.begin("k2_kernel")
    a(f"""
    s_cmp_ge_u32 s2, {K2_GRID}
    s_cbranch_scc1 K2_END
    v_and_b32 v1, 63, v0
    v_lshrrev_b32 v2, 6, v0
    s_mov_b32 s17, 0xffff0000
    s_cmp_ge_u32 s2, {NCV}
    s_cbranch_scc1 K2_W
    """)
    a.stamp(0); a.srd(4,'ws',256*XTS,XT); a.srd(20,'ws',512*RVS,RV)
    a("s_load_dwordx2 s[24:25], s[0:1], 64\n s_load_dwordx2 s[12:13], s[0:1], 144"); a.srd(28,'ws',512*X2S,X2T); a.srd_fin()
    a(f"""
    s_mul_i32 s19, s2, 192
    s_add_u32 s19, s19, {MODP}
    s_add_u32 s12, s12, s19
    s_addc_u32 s13, s13, 0
    s_lshl_b32 s32, s2, 2
    s_load_dwordx8 s[40:47], s[12:13], 0
    s_load_dwordx4 s[48:51], s[12:13], 32
    s_load_dwordx8 s[52:59], s[12:13], 96
    s_load_dwordx4 s[60:63], s[12:13], 128
    s_load_dword s33, s[24:25], s32
    s_mul_i32 s3, s2, {XTS}
    v_lshlrev_b32 v4, 6, v0
    v_lshlrev_b32 v3, 5, v0
    v_lshlrev_b32 v5, 4, v0
    s_mul_i32 s16, s2, {2*RVS}
    s_add_u32 s18, s16, {RVS}
    buffer_load_dwordx4 v[8:11], v5, s[20:23], s16 offen
    buffer_load_dwordx2 v[12:13], v5, s[20:23], s16 offen offset:16
    buffer_load_dwordx4 v[16:19], v5, s[20:23], s18 offen
    buffer_load_dwordx2 v[20:21], v5, s[20:23], s18 offen offset:16
    buffer_load_dwordx4 v[104:107], v4, s[4:7], s3 offen offset:0
    buffer_load_dwordx4 v[108:111], v4, s[4:7], s3 offen offset:16
    buffer_load_dwordx4 v[112:115], v4, s[4:7], s3 offen offset:32
    buffer_load_dwordx4 v[116:119], v4, s[4:7], s3 offen offset:48
    s_mul_i32 s3, s2, {2*X2S}
    """)
    a(f"""
    v_mov_b32 v76, 0
    v_mov_b32 v77, 0
    v_mov_b32 v78, 0
    v_mov_b32 v79, 0
    v_cmp_gt_u32 vcc, 144, v0
    s_and_saveexec_b64 s[34:35], vcc
    ds_write_b128 v5, v[76:79] offset:{H1}
    ds_write_b128 v5, v[76:79] offset:{CH+H1}
    s_mov_b64 exec, s[34:35]
    v_cmp_gt_u32 vcc, 160, v0
    s_and_saveexec_b64 s[34:35], vcc
    ds_write_b128 v5, v[76:79] offset:{H2}
    ds_write_b128 v5, v[76:79] offset:{CH+H2}
    s_mov_b64 exec, s[34:35]
    v_cmp_gt_u32 vcc, 8, v0
    s_and_saveexec_b64 s[34:35], vcc
    """)
    for ch in range(2):
        for c in range(4): a(f"ds_write_b128 v5, v[76:79] offset:{ch*CH+c*CPS+4096}")
    a("s_mov_b64 exec, s[34:35]")
    a(f"""
    v_and_b32 v92, 31, v1
    v_lshrrev_b32 v93, 5, v1
    v_lshrrev_b32 v94, 1, v2
    v_mul_u32_u24 v94, {CH}, v94
    v_sub_u32 v95, 3, v92
    v_and_b32 v95, 3, v95
    v_mul_u32_u24 v96, {CPS-2}, v95
    v_add_u32 v96, v96, v94
    v_lshl_add_u32 v96, v93, 4, v96
    v_lshlrev_b32 v97, 1, v92
    v_sub_u32 v96, v96, v97
    v_add_u32 v96, {2*2047-32*126}, v96
    v_mul_u32_u24 v97, 144, v92
    v_lshl_add_u32 v97, v93, 4, v97
    v_add_u32 v97, v97, v94
    v_mul_u32_u24 v98, 80, v92
    v_lshl_add_u32 v98, v93, 4, v98
    v_add_u32 v98, v98, v94
    v_lshrrev_b32 v99, 3, v0
    v_lshl_add_u32 v99, v99, 4, v5
    v_lshrrev_b32 v100, 2, v0
    v_lshl_add_u32 v100, v100, 4, v5
    s_nop 0
    v_readfirstlane_b32 s36, v2
    """)
    a("s_waitcnt lgkmcnt(0)")
    for ch in range(2):
        for m in range(3):
            b=40+12*ch+4*m; v=48+8*m+ch
            a(f"v_mov_b32 v{v}, s{b}\n v_mov_b32 v{v+2}, s{b+2}\n v_add_f32 v{v}, s{b+1}, v{v}\n v_add_f32 v{v+2}, s{b+3}, v{v+2}\n v_add_f32 v{v}, v{v}, v{v+2}")
    rnd(a,[48,49,56,57,64,65])
    a("v_add_f32 v56, 1.0, v56\n v_add_f32 v57, 1.0, v57")
    rnd(a,[56,57])
    a("v_mov_b32 v72, s33\n v_and_b32 v73, s17, v72\n v_lshlrev_b32 v72, 16, v72")
    a.stamp(1)
    for ch in range(2):
        D=8+8*ch
        a(f"s_waitcnt vmcnt({6-2*ch})")
        a(f"ds_write_b128 v5, v[{D}:{D+3}] offset:{ch*CH}")
        for i in range(4): a(f"v_alignbit_b32 v{80+i}, v{D+i+1}, v{D+i}, 16")
        for i in range(4): a(f"v_mov_b32 v{84+i}, v{D+i+1}")
        for i in range(4): a(f"v_alignbit_b32 v{88+i}, v{D+i+2}, v{D+i+1}, 16")
        for c in range(1,4): a(f"ds_write_b128 v5, v[{76+4*c}:{79+4*c}] offset:{ch*CH+c*CPS}")
        if ch==0: a("s_nop 1")
    a.stamp(2)
    H=list(range(120,136))
    a("s_waitcnt vmcnt(0)")
    for e in range(8): a(f"v_lshlrev_b32 v{120+e}, 16, v{105+2*e}\n v_and_b32 v{128+e}, s17, v{105+2*e}")
    for ch in range(2):
        for e in range(8): a(f"v_mul_f32 v{120+8*ch+e}, v{120+8*ch+e}, v{56+ch}")
    rnd(a,H)
    for ch in range(2):
        for e in range(8): a(f"v_add_f32 v{120+8*ch+e}, v{120+8*ch+e}, v{48+ch}")
    for i in range(8): a(f"v_cvt_pk_bf16_f32 v{224+i}, v{120+2*i}, v{121+2*i}")
    fa=Asm()
    for i in range(8): fa(f"v_lshlrev_b32 v{120+2*i}, 16, v{224+i}\n v_and_b32 v{121+2*i}, s17, v{224+i}")
    for ch in range(2):
        for e in range(8): fa(f"v_mul_f32 v{120+8*ch+e}, v{120+8*ch+e}, v{72+ch}")
    rnd(fa,H)
    for e in range(8): fa(f"v_and_b32 v{105+2*e}, s17, v{104+2*e}\n v_lshlrev_b32 v{104+2*e}, 16, v{104+2*e}")
    a(f"""
    ds_write_b128 v99, v[224:227] offset:{H1+2304}
    ds_write_b128 v99, v[228:231] offset:{CH+H1+2304}
    v_cmp_gt_u32 vcc, 128, v0
    s_and_saveexec_b64 s[34:35], vcc
    ds_write_b128 v100, v[224:227] offset:{H2+2560}
    ds_write_b128 v100, v[228:231] offset:{CH+H2+2560}
    s_mov_b64 exec, s[34:35]
    s_waitcnt lgkmcnt(0)
    s_barrier
    s_bitcmp1_b32 s36, 0
    s_cbranch_scc1 K2_R1
    """)
    def offA(i): return 32*(126-i)
    def offB1(j): return H1+2304 + (-32*j) + 16*((-16*j)//64)
    def offB2(i): return H2+2560 + 2*(1024-16*i) + 16*((1024-16*i)//32)
    def phase(steps):
        LA=4; NA=8; NB=10
        bslot={}; nb=[0]; issued=[]
        cnt=[0]
        def load(n):
            kind,i=steps[n]
            A=8+4*(n%NA)
            a(f"ds_read_b64 v[{A}:{A+1}], v96 offset:{offA(i)}"); a(f"ds_read_b64 v[{A+2}:{A+3}], v96 offset:{offA(i)+8}"); cnt[0]+=2
            need=[('1',i-2),('1',i)] if kind==1 else [('2',i)]
            for key in need:
                if key not in bslot:
                    bslot[key]=184+4*(nb[0]%NB); nb[0]+=1
                    B=bslot[key]
                    if key[0]=='1': a(f"ds_read_b128 v[{B}:{B+3}], v97 offset:{offB1(key[1])}")
                    else: a(f"ds_read_b128 v[{B}:{B+3}], v98 offset:{offB2(key[1])}")
                    cnt[0]+=1
            issued.append(cnt[0])
        first={}; fill=list(fa.l)
        for n in range(min(LA,len(steps))): load(n)
        for n in range(len(steps)):
            if n+LA<len(steps): load(n+LA)
            a(f"s_waitcnt lgkmcnt({min(15,cnt[0]-issued[n])})")
            kind,i=steps[n]; A=8+4*(n%NA)
            for acc,key in ([(136,('1',i)),(152,('1',i-2))] if kind==1 else [(168,('2',i))]):
                B=bslot[key]; c=f"v[{acc}:{acc+15}]" if acc in first else "0"; first[acc]=1
                a(f"v_mfma_f32_32x32x16_bf16 v[{acc}:{acc+15}], v[{A}:{A+3}], v[{B}:{B+3}], {c}")
                if fill: a.l.append(fill.pop(0))
        assert not fill
    def ywrite(base, accs):
        for u,acc in accs:
            for g in range(4): a(f"ds_write_b128 v97, v[{acc+4*g}:{acc+4*g+3}] offset:{base+128*u+32*g}")
    yaddr=f"""
    v_mul_u32_u24 v97, 272, v92
    v_lshl_add_u32 v97, v93, 4, v97
    v_add_u32 v97, v97, v94
    v_mul_u32_u24 v98, 144, v92
    v_lshl_add_u32 v98, v93, 4, v98
    v_add_u32 v98, v98, v94
    s_nop 7
    s_barrier
    """
    a.stamp(3); phase([(1,i) for i in range(-1,47)]); a.stamp(4)
    a(yaddr); ywrite(8704,[(0,136),(1,152)])
    a("s_branch K2_EP\nK2_R1:")
    a.stamp(3); phase([(1,i) for i in range(47,64)]+[(2,i) for i in range(64,127)]); a.stamp(4)
    a(yaddr); ywrite(0,[(0,136),(1,152)])
    for g in range(4): a(f"ds_write_b128 v98, v[{168+4*g}:{171+4*g}] offset:{17408+32*g}")
    a(f"""
    K2_EP:
    v_lshrrev_b32 v99, 3, v0
    v_lshl_add_u32 v99, v99, 4, v3
    v_and_b32 v100, 127, v0
    v_lshrrev_b32 v101, 2, v100
    v_lshlrev_b32 v100, 5, v100
    v_lshl_add_u32 v100, v101, 4, v100
    s_waitcnt lgkmcnt(0)
    s_barrier
    """)
    for ch in range(2):
        for hf in range(2):
            a(f"ds_read_b128 v[{8+8*ch+4*hf}:{11+8*ch+4*hf}], v99 offset:{ch*CH+16*hf}")
            a(f"ds_read_b128 v[{24+8*ch+4*hf}:{27+8*ch+4*hf}], v99 offset:{ch*CH+8704+16*hf}")
            a(f"ds_read_b128 v[{136+8*ch+4*hf}:{139+8*ch+4*hf}], v100 offset:{ch*CH+17408+16*hf}")
    a("s_waitcnt lgkmcnt(0)\n s_cmp_lt_u32 s36, 2\n s_cbranch_scc1 K2_NOB")
    for e in range(16): a(f"v_add_f32 v{8+e}, v{8+e}, v{136+e}")
    a("K2_NOB:"); a.stamp(5)
    Y=list(range(8,24))
    for e in range(16): a(f"v_add_f32 v{8+e}, v{8+e}, v{24+e}")
    rnd(a,Y)
    for e in range(16): a(f"v_add_f32 v{8+e}, v{8+e}, v{120+e}")
    rnd(a,Y)
    for e in range(16): a(f"v_mul_f32 v{8+e}, v{8+e}, v{64+e//8}")
    rnd(a,Y)
    for e in range(16): a(f"v_add_f32 v{8+e}, v{8+e}, v{104+2*(e&7)+e//8}")
    for i in range(8): a(f"v_cvt_pk_bf16_f32 v{24+i}, v{8+2*i}, v{9+2*i}")
    a(f"""
    s_add_u32 s16, s3, {X2S}
    buffer_store_dwordx4 v[24:27], v5, s[28:31], s3 offen
    buffer_store_dwordx4 v[28:31], v5, s[28:31], s16 offen
    """)
    a.stamp(6); a("s_waitcnt vmcnt(0)") if STAMP else 0; a.stamp_end(1,7); a("s_endpgm")
    a("K2_W:"); wlanes(a)
    a.srd(4,'w1',1835008); a.srd(8,'ws',1835008,W1F); a.srd(12,'ws',49152,MODP); a.srd(20,'ws',28672,CSB); a.srd(24,'b1',3584); a.srd_fin()
    a(f"""
    s_sub_u32 s3, s2, {NCV}
    s_and_b32 s18, s3, 1
    s_lshr_b32 s3, s3, 1
    s_lshl_b32 s19, s18, 8
    v_lshl_add_u32 v9, v6, 9, v9
    v_lshl_add_u32 v10, v2, 6, v3
    v_add_u32 v10, s19, v10
    v_mul_u32_u24 v11, 96, v10
    v_mul_u32_u24 v10, 3584, v10
    v_lshl_add_u32 v10, v4, 4, v10
    s_lshl_b32 s16, s3, 6
    v_and_b32 v12, 31, v1
    v_lshlrev_b32 v13, 1, v12
    buffer_load_ushort v14, v13, s[24:27], s16 offen
    """)
    for ks in range(4):
        a(f"s_mov_b32 s32, {16*96*ks}")
        for m in range(2): a(f"buffer_load_dwordx4 v[{48+8*ks+4*m}:{51+8*ks+4*m}], v11, s[12:15], s32 offen offset:{48+16*m}")
    for ks in range(4):
        a(f"buffer_load_dwordx4 v[{16+4*ks}:{19+4*ks}], v10, s[4:7], s16 offen")
        if ks<3: a(f"s_add_u32 s16, s16, {16*3584}")
    for e in range(8): a(f"v_mov_b32 v{112+e}, 0")
    a("v_mov_b32 v120, 0\n v_mov_b32 v121, 0x3f803f80\n s_waitcnt vmcnt(4)")
    for i in range(8):
        b=48+4*i
        a(f"v_add_f32 v{b}, v{b}, v{b+1}\n v_add_f32 v{b+2}, v{b+2}, v{b+3}\n v_add_f32 v{b}, v{b}, v{b+2}")
    rnd(a,[48+4*i for i in range(8)])
    for ks in range(4): a(f"v_add_f32 v{52+8*ks}, 1.0, v{52+8*ks}")
    rnd(a,[52+8*ks for ks in range(4)])
    for ks in range(4):
        sb=48+8*ks; cb=52+8*ks
        a(f"s_waitcnt vmcnt({3-ks})")
        for j in range(4): a(f"v_lshlrev_b32 v{128+2*j}, 16, v{16+4*ks+j}\n v_and_b32 v{129+2*j}, s17, v{16+4*ks+j}")
        for j in range(4): a(f"v_pk_fma_f32 v[{112+2*j}:{113+2*j}], v[{128+2*j}:{129+2*j}], v[{sb}:{sb+1}], v[{112+2*j}:{113+2*j}] op_sel_hi:[1,0,1]")
        for j in range(4): a(f"v_pk_mul_f32 v[{128+2*j}:{129+2*j}], v[{128+2*j}:{129+2*j}], v[{cb}:{cb+1}] op_sel_hi:[1,0]")
        for j in range(4): a(f"v_cvt_pk_bf16_f32 v{16+4*ks+j}, v{128+2*j}, v{129+2*j}")
        a(f"ds_write_b128 v5, v[{16+4*ks}:{19+4*ks}] offset:{1024*ks}")
    a("v_mul_u32_u24 v10, 48, v0")
    for i in range(2): a(f"ds_write_b128 v10, v[{112+4*i}:{115+4*i}] offset:{32768+16*i}")
    a("s_waitcnt lgkmcnt(0)")
    for ks in range(4):
        a(f"ds_read_b64_tr_b16 v[{16+4*ks}:{17+4*ks}], v9 offset:{1024*ks}")
        a(f"ds_read_b64_tr_b16 v[{18+4*ks}:{19+4*ks}], v9 offset:{1024*ks+256}")
    a("s_lshl_b32 s16, s3, 15\n s_lshl_b32 s19, s18, 14\n s_add_u32 s16, s16, s19\n v_lshlrev_b32 v10, 4, v1\n v_lshl_add_u32 v10, v2, 12, v10")
    for ks in range(4):
        a(f"s_waitcnt lgkmcnt({6-2*ks})")
        a(f"buffer_store_dwordx4 v[{16+4*ks}:{19+4*ks}], v10, s[8:11], s16 offen offset:{1024*ks}")
        for j in range(4): a(f"v_dot2c_f32_bf16 v120, v{16+4*ks+j}, v121")
    a(f"""
    v_lshlrev_b32 v10, 2, v0
    v_bfe_u32 v11, v1, 3, 2
    v_mul_u32_u24 v11, 48, v11
    ds_write_b32 v10, v120 offset:49152
    v_and_b32 v15, 7, v1
    v_lshl_add_u32 v11, v15, 2, v11
    v_lshrrev_b32 v15, 5, v0
    v_mul_u32_u24 v15, 1536, v15
    v_add_u32 v11, v11, v15
    s_barrier
    """)
    for i in range(8): a(f"ds_read_b32 v{48+i}, v11 offset:{32768+192*i}")
    a("s_waitcnt lgkmcnt(0)")
    for i in range(1,8): a(f"v_add_f32 v48, v48, v{48+i}")
    a(f"""
    ds_write_b32 v10, v48 offset:50176
    v_lshrrev_b32 v11, 5, v1
    v_lshlrev_b32 v10, 10, v11
    v_lshl_add_u32 v10, v12, 2, v10
    s_waitcnt lgkmcnt(0)
    s_barrier
    """)
    for i in range(8): a(f"ds_read_b32 v{48+i}, v10 offset:{49152+128*i}")
    a(f"""
    v_lshlrev_b32 v13, 4, v12
    v_lshl_add_u32 v13, v11, 3, v13
    s_xor_b32 s19, s18, 1
    v_mul_u32_u24 v11, s19, v11
    v_cvt_f32_u32 v11, v11
    s_lshl_b32 s16, s3, 9
    s_lshl_b32 s19, s18, 2
    s_add_u32 s16, s16, s19
    v_lshlrev_b32 v14, 16, v14
    s_waitcnt lgkmcnt(0)
    """)
    for i in range(1,8): a(f"v_add_f32 v48, v48, v{48+i}")
    a("""
    v_fmac_f32 v48, v11, v14
    v_cmp_gt_u32 vcc, 64, v0
    s_and_saveexec_b64 s[34:35], vcc
    s_cbranch_execz K2_END
    buffer_store_dword v48, v13, s[20:23], s16 offen
    K2_END:
    s_endpgm
    """)
    return desc("k2_kernel",232)
def wlanes(a):
    a("""
    v_lshrrev_b32 v3, 2, v1
    v_and_b32 v4, 3, v1
    v_lshlrev_b32 v5, 4, v1
    v_lshl_add_u32 v5, v2, 13, v5
    v_lshrrev_b32 v6, 4, v1
    v_and_b32 v7, 1, v6
    v_lshrrev_b32 v6, 1, v6
    v_bfe_u32 v8, v1, 2, 2
    v_lshlrev_b32 v9, 3, v4
    v_lshl_add_u32 v9, v7, 5, v9
    v_lshl_add_u32 v9, v8, 6, v9
    v_lshl_add_u32 v9, v2, 13, v9
    """)
def w2relayout(a, base):
    wlanes(a)
    a.srd(4,'w2',1835008); a.srd(8,'ws',1835008,W2F); a.srd_fin()
    a(f"""
    s_sub_u32 s3, s2, {base}
    s_and_b32 s18, s3, 15
    s_lshr_b32 s19, s3, 4
    v_lshl_add_u32 v9, v6, 8, v9
    v_mul_u32_u24 v10, 112, v2
    v_add_u32 v10, v10, v3
    v_lshlrev_b32 v10, 10, v10
    v_lshl_add_u32 v10, v4, 4, v10
    s_mul_i32 s16, s19, {28*16*1024}
    s_lshl_b32 s20, s18, 6
    s_add_u32 s16, s16, s20
    """)
    for ks in range(7):
        a(f"buffer_load_dwordx4 v[{16+4*ks}:{19+4*ks}], v10, s[4:7], s16 offen")
        if ks<6: a(f"s_add_u32 s16, s16, {16*1024}")
    for ks in range(7):
        a(f"s_waitcnt vmcnt({6-ks})")
        a(f"ds_write_b128 v5, v[{16+4*ks}:{19+4*ks}] offset:{1024*ks}")
    a(f"""
    v_mul_u32_u24 v10, 7168, v2
    v_lshl_add_u32 v10, v1, 4, v10
    s_mul_i32 s16, s18, {112*1024}
    s_mul_i32 s20, s19, {28*1024}
    s_add_u32 s16, s16, s20
    s_waitcnt lgkmcnt(0)
    """)
    for ks in range(7):
        a(f"ds_read_b64_tr_b16 v[{16+4*ks}:{17+4*ks}], v9 offset:{1024*ks}")
        a(f"ds_read_b64_tr_b16 v[{18+4*ks}:{19+4*ks}], v9 offset:{1024*ks+512}")
    for ks in range(7):
        a(f"s_waitcnt lgkmcnt({12-2*ks})")
        a(f"buffer_store_dwordx4 v[{16+4*ks}:{19+4*ks}], v10, s[8:11], s16 offen offset:{1024*(ks&3)}")
        if ks==3: a("s_add_u32 s16, s16, 4096")
    a("s_endpgm")
```

```python
from common import *
from k2 import rnd
K3_LDS=65536+1024+2048
K4_LDS=49152
def wgmap(a):
    a("""
    s_and_b32 s3, s2, 7
    s_lshl_b32 s3, s3, 2
    s_bfe_u32 s16, s2, 0x20003
    s_or_b32 s3, s3, s16
    s_lshr_b32 s16, s2, 5
    v_and_b32 v1, 63, v0
    v_lshrrev_b32 v2, 6, v0
    s_mov_b32 s17, 0xffff0000
    v_readfirstlane_b32 s18, v2
    """)
def k3(a):
    a.begin("k3_kernel")
    a("s_cmp_ge_u32 s2, 256\n s_cbranch_scc1 K3_END"); a.stamp(0)
    a.srd(4,'ws',512*X2S,X2T); a.srd(8,'ws',1835008,W1F); a.srd(12,'ws',28672,CSB); a.srd(20,'ws',7340032,HID)
    wgmap(a)
    a("s_bfe_u32 s3, s2, 0x20001\n s_lshl_b32 s3, s3, 3\n s_bfe_u32 s16, s2, 0x30003\n s_or_b32 s3, s3, s16\n s_and_b32 s16, s2, 1\n s_lshl_b32 s16, s16, 2\n s_lshr_b32 s19, s2, 6\n s_or_b32 s16, s16, s19")
    a.srd_fin()
    a(f"""
    v_lshrrev_b32 v3, 3, v1
    v_and_b32 v4, 7, v1
    v_lshlrev_b32 v5, 1, v3
    v_and_b32 v5, 4, v5
    v_xor_b32 v4, v4, v5
    v_lshlrev_b32 v4, 4, v4
    v_mul_u32_u24 v3, {X2S}, v3
    v_add_u32 v4, v3, v4
    s_lshl_b32 s19, s3, 7
    s_mul_i32 s24, s18, {8*X2S}
    s_add_u32 s19, s19, s24
    s_lshl_b32 s25, s18, 10
    s_lshl_b32 s29, s16, 1
    s_add_u32 s29, s29, s3
    s_and_b32 s29, s29, {7*ROT3}
    v_lshlrev_b32 v5, 4, v1
    s_mul_i32 s26, s16, 7
    s_add_u32 s26, s26, s18
    s_lshl_b32 s27, s26, 15
    v_lshrrev_b32 v6, 4, v1
    v_and_b32 v7, 1, v6
    v_lshrrev_b32 v6, 1, v6
    v_bfe_u32 v8, v1, 2, 2
    v_and_b32 v9, 3, v1
    v_lshlrev_b32 v9, 3, v9
    v_lshl_add_u32 v9, v7, 5, v9
    v_lshl_add_u32 v9, v8, 7, v9
    v_lshl_add_u32 v9, v6, 10, v9
    v_lshrrev_b32 v8, 1, v8
    v_lshl_add_u32 v10, v8, 6, v9
    v_xor_b32 v11, 64, v10
    s_cmp_eq_u32 s18, 7
    s_cbranch_scc1 K3_ST
    """)
    PF=3
    def issue(c, w):
        a(f"s_add_u32 m0, s25, {c*8192}\n s_mul_i32 s28, s29, {64*X2S}\n s_add_u32 s28, s28, s19")
        a("buffer_load_dwordx4 v4, s[4:7], s28 offen lds")
        if w:
            a("s_lshl_b32 s28, s29, 12\n s_add_u32 s28, s28, s27")
            for k in range(4):
                R=64+16*(c&3)+4*k
                a(f"buffer_load_dwordx4 v[{R}:{R+3}], v5, s[8:11], s28 offen offset:{1024*k}")
        a("s_add_u32 s29, s29, 1\n s_and_b32 s29, s29, 7")
    def xload(ks):
        S=24+8*(ks&3)
        for lb in range(2):
            for rd in range(2): a(f"ds_read_b64_tr_b16 v[{S+4*lb+2*rd}:{S+4*lb+2*rd+1}], v{10+lb} offset:{2048*ks+512*rd}")
    def loop(body, w):
        n=5 if w else 1
        for c in range(PF): issue(c,w)
        a.stamp(1)
        for c in range(8):
            later=min(PF-1,7-c)*n
            a(f"s_waitcnt vmcnt({later+n-1})\n s_barrier")
            if c&1==0: a.stamp(2+c//2)
            for k in range(4): xload(4*c+k)
            if w: a(f"s_waitcnt vmcnt({later})")
            for k in range(4):
                a(f"s_waitcnt lgkmcnt({4*(3-k)})")
                body(4*c+k)
            if c+PF<8: issue(c+PF,w)
    def mm(ks):
        S=24+8*(ks&3); R=64+4*(ks&15)
        for lb in range(2):
            cc="0" if ks==0 else f"v[{192+16*lb}:{207+16*lb}]"
            a(f"v_mfma_f32_32x32x16_bf16 v[{192+16*lb}:{207+16*lb}], v[{R}:{R+3}], v[{S+4*lb}:{S+4*lb+3}], {cc}")
    a("v_and_b32 v12, 31, v1\n v_lshlrev_b32 v13, 4, v12\n s_lshl_b32 s28, s26, 9\n buffer_load_dwordx4 v[16:19], v13, s[12:15], s28 offen")
    loop(mm, True); a.stamp(6)
    a("""
    v_add_f32 v16, v16, v17
    v_add_f32 v17, v18, v19
    s_lshl_b32 s28, s18, 8
    s_add_u32 s28, s28, 0x10400
    v_lshl_add_u32 v13, v12, 2, s28
    ds_write2_b32 v13, v16, v17 offset1:32
    v_lshl_add_u32 v13, v6, 4, s28
    s_waitcnt lgkmcnt(0)
    """)
    for g in range(4): a(f"ds_read_b128 v[{224+4*g}:{227+4*g}], v13 offset:{32*g}\n ds_read_b128 v[{240+4*g}:{243+4*g}], v13 offset:{128+32*g}")
    a(f"""
    v_and_b32 v12, 31, v1
    v_lshlrev_b32 v12, 3, v12
    v_add_u32 v12, 0x10000, v12
    s_barrier
    """)
    for lb in range(2):
        for hf in range(2): a(f"ds_read_b64 v[{24+4*lb+2*hf}:{25+4*lb+2*hf}], v12 offset:{512*lb+256*hf}")
    a("s_waitcnt lgkmcnt(0)")
    for lb in range(2):
        b=24+4*lb
        a(f"""
        v_add_f32 v{b}, v{b}, v{b+2}
        v_add_f32 v{b+1}, v{b+1}, v{b+3}
        v_mul_f32 v{b}, 0x3b000000, v{b}
        v_mul_f32 v{b+1}, 0x3b000000, v{b+1}
        v_fma_f32 v{b+1}, -v{b}, v{b}, v{b+1}
        v_max_f32 v{b+1}, 0, v{b+1}
        v_cvt_pk_bf16_f32 v{b}, v{b}, v{b+1}
        v_and_b32 v{b+1}, s17, v{b}
        v_lshlrev_b32 v{b}, 16, v{b}
        v_add_f32 v{b+1}, 0x3727c5ac, v{b+1}
        v_cvt_pk_bf16_f32 v{b+1}, v{b+1}, v{b+1}
        v_lshlrev_b32 v{b+1}, 16, v{b+1}
        v_sqrt_f32 v{b+1}, v{b+1}
        s_nop 0
        v_cvt_pk_bf16_f32 v{b+1}, v{b+1}, v{b+1}
        v_lshlrev_b32 v{b+1}, 16, v{b+1}
        v_rcp_f32 v{b+1}, v{b+1}
        """)
    a(f"""
    s_mul_i32 s27, s3, {2*112*1024}
    s_lshl_b32 s28, s26, 11
    s_add_u32 s27, s27, s28
    s_waitcnt vmcnt(0)
    """)
    for lb in range(2):
        b=24+4*lb; A=192+16*lb
        for r in range(16): a(f"v_fma_f32 v{A+r}, -v{b}, v{224+r}, v{A+r}")
        for r in range(16): a(f"v_fma_f32 v{A+r}, v{A+r}, v{b+1}, v{240+r}")
        for r in range(16): a(f"v_max_f32 v{A+r}, 0, v{A+r}")
        for r in range(16): a(f"v_mul_f32 v{A+r}, v{A+r}, v{A+r}")
        for r in range(8): a(f"v_cvt_pk_bf16_f32 v{64+8*lb+r}, v{A+2*r}, v{A+2*r+1}")
        for sp in range(2): a(f"buffer_store_dwordx4 v[{64+8*lb+4*sp}:{67+8*lb+4*sp}], v5, s[20:23], s27 offen offset:{1024*sp}")
        if lb==0: a(f"s_add_u32 s27, s27, {112*1024}")
    a.stamp(7); a("s_waitcnt vmcnt(0)") if STAMP else 0; a.stamp_end(2,8); a("s_endpgm\nK3_ST:")
    a("v_mov_b32 v12, 0x3f803f80")
    for i in range(8): a(f"v_mov_b32 v{16+i}, 0")
    def st(ks):
        S=24+8*(ks&3)
        for j in range(4):
            for lb in range(2):
                a(f"v_dot2c_f32_bf16 v{16+4*lb+2*(j&1)}, v{S+4*lb+j}, v12")
                a(f"v_dot2c_f32_bf16 v{17+4*lb+2*(j&1)}, v{S+4*lb+j}, v{S+4*lb+j}")
    loop(st, False)
    a(f"""
    v_lshlrev_b32 v12, 3, v1
    v_add_u32 v12, 0x10000, v12
    s_nop 2
    v_add_f32 v16, v16, v18
    v_add_f32 v17, v17, v19
    v_add_f32 v20, v20, v22
    v_add_f32 v21, v21, v23
    ds_write_b64 v12, v[16:17]
    ds_write_b64 v12, v[20:21] offset:512
    s_waitcnt lgkmcnt(0)
    s_barrier
    K3_END:
    s_endpgm
    """)
    return desc("k3_kernel",256)
def k4(a):
    a.begin("k4_kernel")
    a("s_cmp_ge_u32 s2, 256\n s_cbranch_scc1 K4_END"); a.stamp(0)
    a.srd(4,'ws',7340032,HID); a.srd(8,'ws',1835008,W2F); a.srd(12,'ws',49152,MODP); a.srd(20,'ws',512*X2S,X2T)
    a.srd(24,'b2',1024); a.srd(28,'out',2097152)
    wgmap(a)
    a.srd_fin()
    a(f"""
    v_mul_u32_u24 v3, {28*1024}, v2
    v_lshl_add_u32 v3, v1, 4, v3
    s_lshr_b32 s36, s18, 1
    s_and_b32 s37, s18, 1
    s_lshl_b32 s32, s3, 1
    s_add_u32 s32, s32, s36
    s_xor_b32 s33, s32, 1
    s_lshl_b32 s34, s16, 1
    s_add_u32 s34, s34, s37
    s_xor_b32 s35, s34, 1
    s_lshl_b32 s38, s3, 1
    s_add_u32 s38, s38, s16
    s_and_b32 s38, s38, {7*ROT4}
    s_mul_i32 s38, s38, 7
    s_lshr_b32 s38, s38, 1
    s_lshl_b32 s38, s38, 10
    """)
    for i in range(4): a(f"s_mul_i32 s{32+i}, s{32+i}, {112*1024}\n v_add_u32 v{28+i}, s{32+i}, v3")
    WIN=10
    def ld(ks):
        S=32+16*(ks%WIN)
        for i in range(4):
            a(f"buffer_load_dwordx4 v[{S+4*i}:{S+4*i+3}], v{28+i}, s[{4 if i<2 else 8}:{7 if i<2 else 11}], s38 offen")
        a(f"s_add_u32 s38, s38, 1024\n s_cmp_eq_u32 s38, {28*1024}\n s_cselect_b32 s38, 0, s38")
    for ks in range(WIN): ld(ks)
    a(f"""
    v_and_b32 v4, 31, v1
    v_lshrrev_b32 v5, 5, v1
    v_and_b32 v6, 1, v2
    v_lshl_add_u32 v4, v6, 5, v4
    s_lshl_b32 s36, s16, 6
    v_add_u32 v4, s36, v4
    v_lshrrev_b32 v6, 1, v2
    v_lshlrev_b32 v6, 5, v6
    v_lshl_add_u32 v6, v5, 2, v6
    s_lshl_b32 s36, s3, 6
    v_add_u32 v6, s36, v6
    v_mul_u32_u24 v7, {X2S}, v4
    v_lshl_add_u32 v7, v6, 1, v7
    v_lshlrev_b32 v8, 10, v6
    v_lshl_add_u32 v8, v4, 1, v8
    v_mul_u32_u24 v9, 96, v4
    v_lshlrev_b32 v10, 1, v4
    v_lshlrev_b32 v11, 4, v1
    v_mul_u32_u24 v13, 12288, v2
    v_add_u32 v13, v13, v11
    v_xor_b32 v12, 1, v2
    v_mul_u32_u24 v12, 12288, v12
    v_add_u32 v12, v12, v11
    v_xor_b32 v14, 2, v2
    v_mul_u32_u24 v14, 12288, v14
    v_add_u32 v14, v14, v11
    v_xor_b32 v15, 3, v2
    v_mul_u32_u24 v15, 12288, v15
    v_add_u32 v15, v15, v11
    """)
    out=[4*WIN]; a.stamp(1)
    for ks in range(28):
        S=32+16*(ks%WIN)
        if ks==27: out[0]-=6
        a(f"s_waitcnt vmcnt({out[0]-4})"); out[0]-=4
        for lb in (1,0):
            for db in (1,0):
                q=2*lb+db; cc="0" if ks==0 else f"a[{16*q}:{16*q+15}]"
                a(f"v_mfma_f32_32x32x16_bf16 a[{16*q}:{16*q+15}], v[{S+4*lb}:{S+4*lb+3}], v[{S+8+4*db}:{S+11+4*db}], {cc}")
        if ks==0: a.stamp(2)
        if ks==13: a.stamp(3)
        if ks>=1 and ks-1+WIN<28: ld(ks-1+WIN); out[0]+=4
        if ks==17:
            for g in range(4): a(f"buffer_load_dwordx2 v[{16+2*g}:{17+2*g}], v7, s[20:23], 0 offen offset:{16*g}")
            a("buffer_load_dwordx4 v[24:27], v9, s[12:15], 0 offen offset:80\n buffer_load_ushort v3, v10, s[24:27], 0 offen"); ex=out[0]; out[0]+=6
    a.stamp(4); a("s_nop 9")
    for q in (3,2,1):
        for g in range(4): a(f"ds_write_b128 v{[0,12,14,15][q]}, a[{16*q+4*g}:{16*q+4*g+3}] offset:{4096*(q-1)+1024*g}")
    a("""
    v_add_f32 v24, v24, v25
    v_add_f32 v26, v26, v27
    v_add_f32 v24, v24, v26
    v_cvt_pk_bf16_f32 v24, v24, v24
    v_lshlrev_b32 v24, 16, v24
    v_lshlrev_b32 v28, 16, v3
    """)
    for r in range(16): a(f"v_accvgpr_read_b32 v{32+r}, a{r}")
    for i in range(8): a(f"v_lshlrev_b32 v{96+2*i}, 16, v{16+i}\n v_and_b32 v{97+2*i}, s17, v{16+i}")
    a("s_waitcnt lgkmcnt(0)\n s_barrier")
    for w in range(3):
        for g in range(4): a(f"ds_read_b128 v[{48+16*w+4*g}:{51+16*w+4*g}], v13 offset:{4096*w+1024*g}")
    for w in range(3):
        a(f"s_waitcnt lgkmcnt({8-4*w})")
        for r in range(0,16,2): a(f"v_pk_add_f32 v[{32+r}:{33+r}], v[{32+r}:{33+r}], v[{48+16*w+r}:{49+16*w+r}]")
    Y=list(range(32,48)); a.stamp(5)
    rnd(a,Y)
    for r in range(16): a(f"v_add_f32 v{32+r}, v{32+r}, v28")
    rnd(a,Y)
    for r in range(16): a(f"v_mul_f32 v{32+r}, v{32+r}, v24")
    rnd(a,Y)
    for r in range(16): a(f"v_add_f32 v{32+r}, v{32+r}, v{96+r}")
    for i in range(8): a(f"v_cvt_pk_bf16_f32 v{48+i}, v{32+2*i}, v{33+2*i}")
    for g in range(4):
        a(f"s_mov_b32 s36, {8192*g}")
        for r in range(4):
            a(f"buffer_store_short{'_d16_hi' if r&1 else ''} v{48+2*g+r//2}, v8, s[28:31], s36 offen offset:{1024*r}")
    a.stamp(6); a("s_waitcnt vmcnt(0)") if STAMP else 0; a.stamp_end(3,7); a("K4_END:\n s_endpgm")
    return desc("k4_kernel",192,64)
```

```python
import sys
from common import *
import k1,k2,k34
hdr=open(f'cdna_kernels/{NAME}.s.ref').read().split('\n')
hdr=[l for l in hdr if l.startswith(';') and '@launch' not in l and 'Override' not in l and 'grid=ceil' not in l]
a=Asm()
d=[k1.k1(a),k2.k2(a),k34.k3(a),k34.k4(a)]
L=[f"; @launch kernel=k1_kernel grid=({k1.K1_GRID},1,1) block=(256,1,1) lds={k1.K1_LDS}",
   f"; @launch kernel=k2_kernel grid=({k2.K2_GRID},1,1) block=(256,1,1) lds={k2.K2_LDS}",
   f"; @launch kernel=k3_kernel grid=(256,1,1) block=(512,1,1) lds={k34.K3_LDS}",
   f"; @launch kernel=k4_kernel grid=(256,1,1) block=(256,1,1) lds={k34.K4_LDS}"]
out='\n'.join(hdr+L)+'\n.amdgcn_target "amdgcn-amd-amdhsa--gfx950"\n.text\n'+a.text()+'.section .rodata,"a"\n'+''.join(d)
import re
out=re.sub(r'(?m)^(\s*buffer_store.*)$', r'\1 sc0 sc1', out)
open(sys.argv[1] if len(sys.argv)>1 else f'cdna_kernels/{NAME}.s','w').write(out)
```

```python
from common import *
NCV=256; NW1=112
K2_GRID=NCV+NW1+(64 if W2AT==2 else 0)
CPS=4416
H1=4*CPS
H2=H1+6912
CH=H2+5120
K2_LDS=2*CH
def rnd(a, regs, tmp=None):
    for i in range(0,len(regs),2): a(f"v_cvt_pk_bf16_f32 v{regs[i]}, v{regs[i]}, v{regs[i+1]}")
    for i in range(0,len(regs),2):
        a(f"v_and_b32 v{regs[i+1]}, s17, v{regs[i]}"); a(f"v_lshlrev_b32 v{regs[i]}, 16, v{regs[i]}")
def k2(a):
    a.begin("k2_kernel")
    a(f"""
    s_cmp_ge_u32 s2, {K2_GRID}
    s_cbranch_scc1 K2_END
    v_and_b32 v1, 63, v0
    v_lshrrev_b32 v2, 6, v0
    s_mov_b32 s17, 0xffff0000
    s_cmp_ge_u32 s2, {NCV}
    s_cbranch_scc1 K2_W
    """)
    a.stamp(0); a.srd(4,'ws',256*XTS,XT); a.srd(20,'ws',512*RVS,RV)
    a("s_load_dwordx2 s[24:25], s[0:1], 64\n s_load_dwordx2 s[12:13], s[0:1], 144"); a.srd(28,'ws',512*X2S,X2T); a.srd_fin()
    a(f"""
    s_mul_i32 s19, s2, 192
    s_add_u32 s19, s19, {MODP}
    s_add_u32 s12, s12, s19
    s_addc_u32 s13, s13, 0
    s_lshl_b32 s32, s2, 2
    s_load_dwordx8 s[40:47], s[12:13], 0
    s_load_dwordx4 s[48:51], s[12:13], 32
    s_load_dwordx8 s[52:59], s[12:13], 96
    s_load_dwordx4 s[60:63], s[12:13], 128
    s_load_dword s33, s[24:25], s32
    s_mul_i32 s3, s2, {XTS}
    v_lshlrev_b32 v4, 6, v0
    v_lshlrev_b32 v3, 5, v0
    v_lshlrev_b32 v5, 4, v0
    s_mul_i32 s16, s2, {2*RVS}
    s_add_u32 s18, s16, {RVS}
    buffer_load_dwordx4 v[8:11], v5, s[20:23], s16 offen
    buffer_load_dwordx2 v[12:13], v5, s[20:23], s16 offen offset:16
    buffer_load_dwordx4 v[16:19], v5, s[20:23], s18 offen
    buffer_load_dwordx2 v[20:21], v5, s[20:23], s18 offen offset:16
    buffer_load_dwordx4 v[104:107], v4, s[4:7], s3 offen offset:0
    buffer_load_dwordx4 v[108:111], v4, s[4:7], s3 offen offset:16
    buffer_load_dwordx4 v[112:115], v4, s[4:7], s3 offen offset:32
    buffer_load_dwordx4 v[116:119], v4, s[4:7], s3 offen offset:48
    s_mul_i32 s3, s2, {2*X2S}
    """)
    a(f"""
    v_mov_b32 v76, 0
    v_mov_b32 v77, 0
    v_mov_b32 v78, 0
    v_mov_b32 v79, 0
    v_cmp_gt_u32 vcc, 144, v0
    s_and_saveexec_b64 s[34:35], vcc
    ds_write_b128 v5, v[76:79] offset:{H1}
    ds_write_b128 v5, v[76:79] offset:{CH+H1}
    s_mov_b64 exec, s[34:35]
    v_cmp_gt_u32 vcc, 160, v0
    s_and_saveexec_b64 s[34:35], vcc
    ds_write_b128 v5, v[76:79] offset:{H2}
    ds_write_b128 v5, v[76:79] offset:{CH+H2}
    s_mov_b64 exec, s[34:35]
    v_cmp_gt_u32 vcc, 8, v0
    s_and_saveexec_b64 s[34:35], vcc
    """)
    for ch in range(2):
        for c in range(4): a(f"ds_write_b128 v5, v[76:79] offset:{ch*CH+c*CPS+4096}")
    a("s_mov_b64 exec, s[34:35]")
    a(f"""
    v_and_b32 v92, 31, v1
    v_lshrrev_b32 v93, 5, v1
    v_lshrrev_b32 v94, 1, v2
    v_mul_u32_u24 v94, {CH}, v94
    v_sub_u32 v95, 3, v92
    v_and_b32 v95, 3, v95
    v_mul_u32_u24 v96, {CPS-2}, v95
    v_add_u32 v96, v96, v94
    v_lshl_add_u32 v96, v93, 4, v96
    v_lshlrev_b32 v97, 1, v92
    v_sub_u32 v96, v96, v97
    v_add_u32 v96, {2*2047-32*126}, v96
    v_mul_u32_u24 v97, 144, v92
    v_lshl_add_u32 v97, v93, 4, v97
    v_add_u32 v97, v97, v94
    v_mul_u32_u24 v98, 80, v92
    v_lshl_add_u32 v98, v93, 4, v98
    v_add_u32 v98, v98, v94
    v_lshrrev_b32 v99, 3, v0
    v_lshl_add_u32 v99, v99, 4, v5
    v_lshrrev_b32 v100, 2, v0
    v_lshl_add_u32 v100, v100, 4, v5
    s_nop 0
    v_readfirstlane_b32 s36, v2
    """)
    a("s_waitcnt lgkmcnt(0)")
    for ch in range(2):
        for m in range(3):
            b=40+12*ch+4*m; v=48+8*m+ch
            a(f"v_mov_b32 v{v}, s{b}\n v_mov_b32 v{v+2}, s{b+2}\n v_add_f32 v{v}, s{b+1}, v{v}\n v_add_f32 v{v+2}, s{b+3}, v{v+2}\n v_add_f32 v{v}, v{v}, v{v+2}")
    rnd(a,[48,49,56,57,64,65])
    a("v_add_f32 v56, 1.0, v56\n v_add_f32 v57, 1.0, v57")
    rnd(a,[56,57])
    a("v_mov_b32 v72, s33\n v_and_b32 v73, s17, v72\n v_lshlrev_b32 v72, 16, v72")
    a.stamp(1)
    for ch in range(2):
        D=8+8*ch
        a(f"s_waitcnt vmcnt({6-2*ch})")
        a(f"ds_write_b128 v5, v[{D}:{D+3}] offset:{ch*CH}")
        for i in range(4): a(f"v_alignbit_b32 v{80+i}, v{D+i+1}, v{D+i}, 16")
        for i in range(4): a(f"v_mov_b32 v{84+i}, v{D+i+1}")
        for i in range(4): a(f"v_alignbit_b32 v{88+i}, v{D+i+2}, v{D+i+1}, 16")
        for c in range(1,4): a(f"ds_write_b128 v5, v[{76+4*c}:{79+4*c}] offset:{ch*CH+c*CPS}")
        if ch==0: a("s_nop 1")
    a.stamp(2)
    H=list(range(120,136))
    a("s_waitcnt vmcnt(0)")
    for e in range(8): a(f"v_lshlrev_b32 v{120+e}, 16, v{105+2*e}\n v_and_b32 v{128+e}, s17, v{105+2*e}")
    for ch in range(2):
        for e in range(8): a(f"v_mul_f32 v{120+8*ch+e}, v{120+8*ch+e}, v{56+ch}")
    rnd(a,H)
    for ch in range(2):
        for e in range(8): a(f"v_add_f32 v{120+8*ch+e}, v{120+8*ch+e}, v{48+ch}")
    for i in range(8): a(f"v_cvt_pk_bf16_f32 v{224+i}, v{120+2*i}, v{121+2*i}")
    fa=Asm()
    for i in range(8): fa(f"v_lshlrev_b32 v{120+2*i}, 16, v{224+i}\n v_and_b32 v{121+2*i}, s17, v{224+i}")
    for ch in range(2):
        for e in range(8): fa(f"v_mul_f32 v{120+8*ch+e}, v{120+8*ch+e}, v{72+ch}")
    rnd(fa,H)
    for e in range(8): fa(f"v_and_b32 v{105+2*e}, s17, v{104+2*e}\n v_lshlrev_b32 v{104+2*e}, 16, v{104+2*e}")
    a(f"""
    ds_write_b128 v99, v[224:227] offset:{H1+2304}
    ds_write_b128 v99, v[228:231] offset:{CH+H1+2304}
    v_cmp_gt_u32 vcc, 128, v0
    s_and_saveexec_b64 s[34:35], vcc
    ds_write_b128 v100, v[224:227] offset:{H2+2560}
    ds_write_b128 v100, v[228:231] offset:{CH+H2+2560}
    s_mov_b64 exec, s[34:35]
    s_waitcnt lgkmcnt(0)
    s_barrier
    s_bitcmp1_b32 s36, 0
    s_cbranch_scc1 K2_R1
    """)
    def offA(i): return 32*(126-i)
    def offB1(j): return H1+2304 + (-32*j) + 16*((-16*j)//64)
    def offB2(i): return H2+2560 + 2*(1024-16*i) + 16*((1024-16*i)//32)
    def phase(steps):
        LA=4; NA=8; NB=10
        bslot={}; nb=[0]; issued=[]
        cnt=[0]
        def load(n):
            kind,i=steps[n]
            A=8+4*(n%NA)
            a(f"ds_read_b64 v[{A}:{A+1}], v96 offset:{offA(i)}"); a(f"ds_read_b64 v[{A+2}:{A+3}], v96 offset:{offA(i)+8}"); cnt[0]+=2
            need=[('1',i-2),('1',i)] if kind==1 else [('2',i)]
            for key in need:
                if key not in bslot:
                    bslot[key]=184+4*(nb[0]%NB); nb[0]+=1
                    B=bslot[key]
                    if key[0]=='1': a(f"ds_read_b128 v[{B}:{B+3}], v97 offset:{offB1(key[1])}")
                    else: a(f"ds_read_b128 v[{B}:{B+3}], v98 offset:{offB2(key[1])}")
                    cnt[0]+=1
            issued.append(cnt[0])
        first={}; fill=list(fa.l)
        for n in range(min(LA,len(steps))): load(n)
        for n in range(len(steps)):
            if n+LA<len(steps): load(n+LA)
            a(f"s_waitcnt lgkmcnt({min(15,cnt[0]-issued[n])})")
            kind,i=steps[n]; A=8+4*(n%NA)
            for acc,key in ([(136,('1',i)),(152,('1',i-2))] if kind==1 else [(168,('2',i))]):
                B=bslot[key]; c=f"v[{acc}:{acc+15}]" if acc in first else "0"; first[acc]=1
                a(f"v_mfma_f32_32x32x16_bf16 v[{acc}:{acc+15}], v[{A}:{A+3}], v[{B}:{B+3}], {c}")
                if fill: a.l.append(fill.pop(0))
        assert not fill
    def ywrite(base, accs):
        for u,acc in accs:
            for g in range(4): a(f"ds_write_b128 v97, v[{acc+4*g}:{acc+4*g+3}] offset:{base+128*u+32*g}")
    yaddr=f"""
    v_mul_u32_u24 v97, 272, v92
    v_lshl_add_u32 v97, v93, 4, v97
    v_add_u32 v97, v97, v94
    v_mul_u32_u24 v98, 144, v92
    v_lshl_add_u32 v98, v93, 4, v98
    v_add_u32 v98, v98, v94
    s_nop 7
    s_barrier
    """
    a.stamp(3); phase([(1,i) for i in range(-1,47)]); a.stamp(4)
    a(yaddr); ywrite(8704,[(0,136),(1,152)])
    a("s_branch K2_EP\nK2_R1:")
    a.stamp(3); phase([(1,i) for i in range(47,64)]+[(2,i) for i in range(64,127)]); a.stamp(4)
    a(yaddr); ywrite(0,[(0,136),(1,152)])
    for g in range(4): a(f"ds_write_b128 v98, v[{168+4*g}:{171+4*g}] offset:{17408+32*g}")
    a(f"""
    K2_EP:
    v_lshrrev_b32 v99, 3, v0
    v_lshl_add_u32 v99, v99, 4, v3
    v_and_b32 v100, 127, v0
    v_lshrrev_b32 v101, 2, v100
    v_lshlrev_b32 v100, 5, v100
    v_lshl_add_u32 v100, v101, 4, v100
    s_waitcnt lgkmcnt(0)
    s_barrier
    """)
    for ch in range(2):
        for hf in range(2):
            a(f"ds_read_b128 v[{8+8*ch+4*hf}:{11+8*ch+4*hf}], v99 offset:{ch*CH+16*hf}")
            a(f"ds_read_b128 v[{24+8*ch+4*hf}:{27+8*ch+4*hf}], v99 offset:{ch*CH+8704+16*hf}")
            a(f"ds_read_b128 v[{136+8*ch+4*hf}:{139+8*ch+4*hf}], v100 offset:{ch*CH+17408+16*hf}")
    a("s_waitcnt lgkmcnt(0)\n s_cmp_lt_u32 s36, 2\n s_cbranch_scc1 K2_NOB")
    for e in range(16): a(f"v_add_f32 v{8+e}, v{8+e}, v{136+e}")
    a("K2_NOB:"); a.stamp(5)
    Y=list(range(8,24))
    for e in range(16): a(f"v_add_f32 v{8+e}, v{8+e}, v{24+e}")
    rnd(a,Y)
    for e in range(16): a(f"v_add_f32 v{8+e}, v{8+e}, v{120+e}")
    rnd(a,Y)
    for e in range(16): a(f"v_mul_f32 v{8+e}, v{8+e}, v{64+e//8}")
    rnd(a,Y)
    for e in range(16): a(f"v_add_f32 v{8+e}, v{8+e}, v{104+2*(e&7)+e//8}")
    for i in range(8): a(f"v_cvt_pk_bf16_f32 v{24+i}, v{8+2*i}, v{9+2*i}")
    a(f"""
    s_add_u32 s16, s3, {X2S}
    buffer_store_dwordx4 v[24:27], v5, s[28:31], s3 offen
    buffer_store_dwordx4 v[28:31], v5, s[28:31], s16 offen
    """)
    a.stamp(6); a("s_waitcnt vmcnt(0)") if STAMP else 0; a.stamp_end(1,7); a("s_endpgm")
    if W2AT==2:
        a("K2_W2:"); w2relayout(a, NCV+NW1)
        a(f"K2_W:\n s_cmp_ge_u32 s2, {NCV+NW1}\n s_cbranch_scc1 K2_W2")
    else: a("K2_W:")
    wlanes(a)
    a.srd(4,'w1',1835008); a.srd(8,'ws',1835008,W1F); a.srd(12,'ws',49152,MODP); a.srd(20,'ws',28672,CSB); a.srd(24,'b1',3584); a.srd_fin()
    a(f"""
    s_sub_u32 s3, s2, {NCV}
    s_and_b32 s18, s3, 1
    s_lshr_b32 s3, s3, 1
    s_lshl_b32 s19, s18, 8
    v_lshl_add_u32 v9, v6, 9, v9
    v_lshl_add_u32 v10, v2, 6, v3
    v_add_u32 v10, s19, v10
    v_mul_u32_u24 v11, 96, v10
    v_mul_u32_u24 v10, 3584, v10
    v_lshl_add_u32 v10, v4, 4, v10
    s_lshl_b32 s16, s3, 6
    v_and_b32 v12, 31, v1
    v_lshlrev_b32 v13, 1, v12
    buffer_load_ushort v14, v13, s[24:27], s16 offen
    """)
    for ks in range(4):
        a(f"s_mov_b32 s32, {16*96*ks}")
        for m in range(2): a(f"buffer_load_dwordx4 v[{48+8*ks+4*m}:{51+8*ks+4*m}], v11, s[12:15], s32 offen offset:{48+16*m}")
    for ks in range(4):
        a(f"buffer_load_dwordx4 v[{16+4*ks}:{19+4*ks}], v10, s[4:7], s16 offen")
        if ks<3: a(f"s_add_u32 s16, s16, {16*3584}")
    for e in range(8): a(f"v_mov_b32 v{112+e}, 0")
    a("v_mov_b32 v120, 0\n v_mov_b32 v121, 0x3f803f80\n s_waitcnt vmcnt(4)")
    for i in range(8):
        b=48+4*i
        a(f"v_add_f32 v{b}, v{b}, v{b+1}\n v_add_f32 v{b+2}, v{b+2}, v{b+3}\n v_add_f32 v{b}, v{b}, v{b+2}")
    rnd(a,[48+4*i for i in range(8)])
    for ks in range(4): a(f"v_add_f32 v{52+8*ks}, 1.0, v{52+8*ks}")
    rnd(a,[52+8*ks for ks in range(4)])
    for ks in range(4):
        sb=48+8*ks; cb=52+8*ks
        a(f"s_waitcnt vmcnt({3-ks})")
        for j in range(4): a(f"v_lshlrev_b32 v{128+2*j}, 16, v{16+4*ks+j}\n v_and_b32 v{129+2*j}, s17, v{16+4*ks+j}")
        for j in range(4): a(f"v_pk_fma_f32 v[{112+2*j}:{113+2*j}], v[{128+2*j}:{129+2*j}], v[{sb}:{sb+1}], v[{112+2*j}:{113+2*j}] op_sel_hi:[1,0,1]")
        for j in range(4): a(f"v_pk_mul_f32 v[{128+2*j}:{129+2*j}], v[{128+2*j}:{129+2*j}], v[{cb}:{cb+1}] op_sel_hi:[1,0]")
        for j in range(4): a(f"v_cvt_pk_bf16_f32 v{16+4*ks+j}, v{128+2*j}, v{129+2*j}")
        a(f"ds_write_b128 v5, v[{16+4*ks}:{19+4*ks}] offset:{1024*ks}")
    a("v_mul_u32_u24 v10, 48, v0")
    for i in range(2): a(f"ds_write_b128 v10, v[{112+4*i}:{115+4*i}] offset:{32768+16*i}")
    a("s_waitcnt lgkmcnt(0)")
    for ks in range(4):
        a(f"ds_read_b64_tr_b16 v[{16+4*ks}:{17+4*ks}], v9 offset:{1024*ks}")
        a(f"ds_read_b64_tr_b16 v[{18+4*ks}:{19+4*ks}], v9 offset:{1024*ks+256}")
    a("s_lshl_b32 s16, s3, 15\n s_lshl_b32 s19, s18, 14\n s_add_u32 s16, s16, s19\n v_lshlrev_b32 v10, 4, v1\n v_lshl_add_u32 v10, v2, 12, v10")
    for ks in range(4):
        a(f"s_waitcnt lgkmcnt({6-2*ks})")
        a(f"buffer_store_dwordx4 v[{16+4*ks}:{19+4*ks}], v10, s[8:11], s16 offen offset:{1024*ks}")
        for j in range(4): a(f"v_dot2c_f32_bf16 v120, v{16+4*ks+j}, v121")
    a(f"""
    v_lshlrev_b32 v10, 2, v0
    v_bfe_u32 v11, v1, 3, 2
    v_mul_u32_u24 v11, 48, v11
    ds_write_b32 v10, v120 offset:49152
    v_and_b32 v15, 7, v1
    v_lshl_add_u32 v11, v15, 2, v11
    v_lshrrev_b32 v15, 5, v0
    v_mul_u32_u24 v15, 1536, v15
    v_add_u32 v11, v11, v15
    s_barrier
    """)
    for i in range(8): a(f"ds_read_b32 v{48+i}, v11 offset:{32768+192*i}")
    a("s_waitcnt lgkmcnt(0)")
    for i in range(1,8): a(f"v_add_f32 v48, v48, v{48+i}")
    a(f"""
    ds_write_b32 v10, v48 offset:50176
    v_lshrrev_b32 v11, 5, v1
    v_lshlrev_b32 v10, 10, v11
    v_lshl_add_u32 v10, v12, 2, v10
    s_waitcnt lgkmcnt(0)
    s_barrier
    """)
    for i in range(8): a(f"ds_read_b32 v{48+i}, v10 offset:{49152+128*i}")
    a(f"""
    v_lshlrev_b32 v13, 4, v12
    v_lshl_add_u32 v13, v11, 3, v13
    s_xor_b32 s19, s18, 1
    v_mul_u32_u24 v11, s19, v11
    v_cvt_f32_u32 v11, v11
    s_lshl_b32 s16, s3, 9
    s_lshl_b32 s19, s18, 2
    s_add_u32 s16, s16, s19
    v_lshlrev_b32 v14, 16, v14
    s_waitcnt lgkmcnt(0)
    """)
    for i in range(1,8): a(f"v_add_f32 v48, v48, v{48+i}")
    a("""
    v_fmac_f32 v48, v11, v14
    v_cmp_gt_u32 vcc, 64, v0
    s_and_saveexec_b64 s[34:35], vcc
    s_cbranch_execz K2_END
    buffer_store_dword v48, v13, s[20:23], s16 offen
    K2_END:
    s_endpgm
    """)
    return desc("k2_kernel",232)
def wlanes(a):
    a("""
    v_lshrrev_b32 v3, 2, v1
    v_and_b32 v4, 3, v1
    v_lshlrev_b32 v5, 4, v1
    v_lshl_add_u32 v5, v2, 13, v5
    v_lshrrev_b32 v6, 4, v1
    v_and_b32 v7, 1, v6
    v_lshrrev_b32 v6, 1, v6
    v_bfe_u32 v8, v1, 2, 2
    v_lshlrev_b32 v9, 3, v4
    v_lshl_add_u32 v9, v7, 5, v9
    v_lshl_add_u32 v9, v8, 6, v9
    v_lshl_add_u32 v9, v2, 13, v9
    """)
def w2relayout(a, base):
    wlanes(a)
    a.srd(4,'w2',1835008); a.srd(8,'ws',1835008,W2F); a.srd_fin()
    a(f"""
    s_sub_u32 s3, s2, {base}
    s_and_b32 s18, s3, 15
    s_lshr_b32 s19, s3, 4
    v_lshl_add_u32 v9, v6, 8, v9
    v_mul_u32_u24 v10, 112, v2
    v_add_u32 v10, v10, v3
    v_lshlrev_b32 v10, 10, v10
    v_lshl_add_u32 v10, v4, 4, v10
    s_mul_i32 s16, s19, {28*16*1024}
    s_lshl_b32 s20, s18, 6
    s_add_u32 s16, s16, s20
    """)
    for ks in range(7):
        a(f"buffer_load_dwordx4 v[{16+4*ks}:{19+4*ks}], v10, s[4:7], s16 offen")
        if ks<6: a(f"s_add_u32 s16, s16, {16*1024}")
    for ks in range(7):
        a(f"s_waitcnt vmcnt({6-ks})")
        a(f"ds_write_b128 v5, v[{16+4*ks}:{19+4*ks}] offset:{1024*ks}")
    a(f"""
    v_mul_u32_u24 v10, 7168, v2
    v_lshl_add_u32 v10, v1, 4, v10
    s_mul_i32 s16, s18, {112*1024}
    s_mul_i32 s20, s19, {28*1024}
    s_add_u32 s16, s16, s20
    s_waitcnt lgkmcnt(0)
    """)
    for ks in range(7):
        a(f"ds_read_b64_tr_b16 v[{16+4*ks}:{17+4*ks}], v9 offset:{1024*ks}")
        a(f"ds_read_b64_tr_b16 v[{18+4*ks}:{19+4*ks}], v9 offset:{1024*ks+512}")
    for ks in range(7):
        a(f"s_waitcnt lgkmcnt({12-2*ks})")
        a(f"buffer_store_dwordx4 v[{16+4*ks}:{19+4*ks}], v10, s[8:11], s16 offen offset:{1024*(ks&3)}")
        if ks==3: a("s_add_u32 s16, s16, 4096")
    a("s_endpgm")
```

```python
from common import *
from k2 import rnd
K3_LDS=65536+1024+2048
K4_LDS=49152+64*144
def wgmap(a):
    a("""
    s_and_b32 s3, s2, 7
    s_lshl_b32 s3, s3, 2
    s_bfe_u32 s16, s2, 0x20003
    s_or_b32 s3, s3, s16
    s_lshr_b32 s16, s2, 5
    v_and_b32 v1, 63, v0
    v_lshrrev_b32 v2, 6, v0
    s_mov_b32 s17, 0xffff0000
    v_readfirstlane_b32 s18, v2
    """)
def k3(a):
    a.begin("k3_kernel")
    a("s_cmp_ge_u32 s2, 256\n s_cbranch_scc1 K3_END"); a.stamp(0)
    a.srd(4,'ws',512*X2S,X2T); a.srd(8,'ws',1835008,W1F); a.srd(12,'ws',28672,CSB); a.srd(20,'ws',7340032,HID)
    wgmap(a)
    a("s_bfe_u32 s3, s2, 0x20001\n s_lshl_b32 s3, s3, 3\n s_bfe_u32 s16, s2, 0x30003\n s_or_b32 s3, s3, s16\n s_and_b32 s16, s2, 1\n s_lshl_b32 s16, s16, 2\n s_lshr_b32 s19, s2, 6\n s_or_b32 s16, s16, s19")
    a.srd_fin()
    a(f"""
    v_lshrrev_b32 v3, 3, v1
    v_and_b32 v4, 7, v1
    v_lshlrev_b32 v5, 1, v3
    v_and_b32 v5, 4, v5
    v_xor_b32 v4, v4, v5
    v_lshlrev_b32 v4, 4, v4
    v_mul_u32_u24 v3, {X2S}, v3
    v_add_u32 v4, v3, v4
    s_lshl_b32 s19, s3, 7
    s_mul_i32 s24, s18, {8*X2S}
    s_add_u32 s19, s19, s24
    s_lshl_b32 s25, s18, 10
    s_lshl_b32 s29, s16, 1
    s_add_u32 s29, s29, s3
    s_and_b32 s29, s29, {7*ROT3}
    v_lshlrev_b32 v5, 4, v1
    s_mul_i32 s26, s16, 7
    s_add_u32 s26, s26, s18
    s_lshl_b32 s27, s26, 15
    v_lshrrev_b32 v6, 4, v1
    v_and_b32 v7, 1, v6
    v_lshrrev_b32 v6, 1, v6
    v_bfe_u32 v8, v1, 2, 2
    v_and_b32 v9, 3, v1
    v_lshlrev_b32 v9, 3, v9
    v_lshl_add_u32 v9, v7, 5, v9
    v_lshl_add_u32 v9, v8, 7, v9
    v_lshl_add_u32 v9, v6, 10, v9
    v_lshrrev_b32 v8, 1, v8
    v_lshl_add_u32 v10, v8, 6, v9
    v_xor_b32 v11, 64, v10
    s_cmp_eq_u32 s18, 7
    s_cbranch_scc1 K3_ST
    """)
    PF=3
    def issue(c, w):
        a(f"s_add_u32 m0, s25, {c*8192}\n s_mul_i32 s28, s29, {64*X2S}\n s_add_u32 s28, s28, s19")
        a("buffer_load_dwordx4 v4, s[4:7], s28 offen lds")
        if w:
            a("s_lshl_b32 s28, s29, 12\n s_add_u32 s28, s28, s27")
            for k in range(4):
                R=64+16*(c&3)+4*k
                a(f"buffer_load_dwordx4 v[{R}:{R+3}], v5, s[8:11], s28 offen offset:{1024*k}")
        a("s_add_u32 s29, s29, 1\n s_and_b32 s29, s29, 7")
    def xload(ks):
        S=24+8*(ks&3)
        for lb in range(2):
            for rd in range(2): a(f"ds_read_b64_tr_b16 v[{S+4*lb+2*rd}:{S+4*lb+2*rd+1}], v{10+lb} offset:{2048*ks+512*rd}")
    def loop(body, w):
        n=5 if w else 1
        for c in range(PF): issue(c,w)
        a.stamp(1)
        for c in range(8):
            later=min(PF-1,7-c)*n
            a(f"s_waitcnt vmcnt({later+n-1})\n s_barrier")
            if c&1==0: a.stamp(2+c//2)
            for k in range(4): xload(4*c+k)
            if w: a(f"s_waitcnt vmcnt({later})")
            for k in range(4):
                a(f"s_waitcnt lgkmcnt({4*(3-k)})")
                body(4*c+k)
            if c+PF<8: issue(c+PF,w)
    def mm(ks):
        S=24+8*(ks&3); R=64+4*(ks&15)
        for lb in range(2):
            cc="0" if ks==0 else f"v[{192+16*lb}:{207+16*lb}]"
            a(f"v_mfma_f32_32x32x16_bf16 v[{192+16*lb}:{207+16*lb}], v[{R}:{R+3}], v[{S+4*lb}:{S+4*lb+3}], {cc}")
    a("v_and_b32 v12, 31, v1\n v_lshlrev_b32 v13, 4, v12\n s_lshl_b32 s28, s26, 9\n buffer_load_dwordx4 v[16:19], v13, s[12:15], s28 offen")
    loop(mm, True); a.stamp(6)
    a("""
    v_add_f32 v16, v16, v17
    v_add_f32 v17, v18, v19
    s_lshl_b32 s28, s18, 8
    s_add_u32 s28, s28, 0x10400
    v_lshl_add_u32 v13, v12, 2, s28
    ds_write2_b32 v13, v16, v17 offset1:32
    v_lshl_add_u32 v13, v6, 4, s28
    s_waitcnt lgkmcnt(0)
    """)
    for g in range(4): a(f"ds_read_b128 v[{224+4*g}:{227+4*g}], v13 offset:{32*g}\n ds_read_b128 v[{240+4*g}:{243+4*g}], v13 offset:{128+32*g}")
    a(f"""
    v_and_b32 v12, 31, v1
    v_lshlrev_b32 v12, 3, v12
    v_add_u32 v12, 0x10000, v12
    s_barrier
    """)
    for lb in range(2):
        for hf in range(2): a(f"ds_read_b64 v[{24+4*lb+2*hf}:{25+4*lb+2*hf}], v12 offset:{512*lb+256*hf}")
    a("s_waitcnt lgkmcnt(0)")
    for lb in range(2):
        b=24+4*lb
        a(f"""
        v_add_f32 v{b}, v{b}, v{b+2}
        v_add_f32 v{b+1}, v{b+1}, v{b+3}
        v_mul_f32 v{b}, 0x3b000000, v{b}
        v_mul_f32 v{b+1}, 0x3b000000, v{b+1}
        v_fma_f32 v{b+1}, -v{b}, v{b}, v{b+1}
        v_max_f32 v{b+1}, 0, v{b+1}
        v_cvt_pk_bf16_f32 v{b}, v{b}, v{b+1}
        v_and_b32 v{b+1}, s17, v{b}
        v_lshlrev_b32 v{b}, 16, v{b}
        v_add_f32 v{b+1}, 0x3727c5ac, v{b+1}
        v_cvt_pk_bf16_f32 v{b+1}, v{b+1}, v{b+1}
        v_lshlrev_b32 v{b+1}, 16, v{b+1}
        v_sqrt_f32 v{b+1}, v{b+1}
        s_nop 0
        v_cvt_pk_bf16_f32 v{b+1}, v{b+1}, v{b+1}
        v_lshlrev_b32 v{b+1}, 16, v{b+1}
        v_rcp_f32 v{b+1}, v{b+1}
        """)
    a(f"""
    s_mul_i32 s27, s3, {2*112*1024}
    s_lshl_b32 s28, s26, 11
    s_add_u32 s27, s27, s28
    s_waitcnt vmcnt(0)
    """)
    for lb in range(2):
        b=24+4*lb; A=192+16*lb
        for r in range(16): a(f"v_fma_f32 v{A+r}, -v{b}, v{224+r}, v{A+r}")
        for r in range(16): a(f"v_fma_f32 v{A+r}, v{A+r}, v{b+1}, v{240+r}")
        for r in range(16): a(f"v_max_f32 v{A+r}, 0, v{A+r}")
        for r in range(16): a(f"v_mul_f32 v{A+r}, v{A+r}, v{A+r}")
        for r in range(8): a(f"v_cvt_pk_bf16_f32 v{64+8*lb+r}, v{A+2*r}, v{A+2*r+1}")
        for sp in range(2): a(f"buffer_store_dwordx4 v[{64+8*lb+4*sp}:{67+8*lb+4*sp}], v5, s[20:23], s27 offen offset:{1024*sp}")
        if lb==0: a(f"s_add_u32 s27, s27, {112*1024}")
    a.stamp(7); a("s_waitcnt vmcnt(0)") if STAMP else 0; a.stamp_end(2,8); a("s_endpgm\nK3_ST:")
    a("v_mov_b32 v12, 0x3f803f80")
    for i in range(8): a(f"v_mov_b32 v{16+i}, 0")
    def st(ks):
        S=24+8*(ks&3)
        for j in range(4):
            for lb in range(2):
                a(f"v_dot2c_f32_bf16 v{16+4*lb+2*(j&1)}, v{S+4*lb+j}, v12")
                a(f"v_dot2c_f32_bf16 v{17+4*lb+2*(j&1)}, v{S+4*lb+j}, v{S+4*lb+j}")
    loop(st, False)
    a(f"""
    v_lshlrev_b32 v12, 3, v1
    v_add_u32 v12, 0x10000, v12
    s_nop 2
    v_add_f32 v16, v16, v18
    v_add_f32 v17, v17, v19
    v_add_f32 v20, v20, v22
    v_add_f32 v21, v21, v23
    ds_write_b64 v12, v[16:17]
    ds_write_b64 v12, v[20:21] offset:512
    s_waitcnt lgkmcnt(0)
    s_barrier
    K3_END:
    s_endpgm
    """)
    return desc("k3_kernel",256)
def k4(a):
    a.begin("k4_kernel")
    a("s_cmp_ge_u32 s2, 256\n s_cbranch_scc1 K4_END"); a.stamp(0)
    a.srd(4,'ws',7340032,HID); a.srd(8,'ws',1835008,W2F); a.srd(12,'ws',49152,MODP); a.srd(20,'ws',512*X2S,X2T)
    a.srd(24,'b2',1024); a.srd(28,'out',2097152)
    wgmap(a)
    a.srd_fin()
    a(f"""
    v_mul_u32_u24 v3, {28*1024}, v2
    v_lshl_add_u32 v3, v1, 4, v3
    s_lshr_b32 s36, s18, 1
    s_and_b32 s37, s18, 1
    s_lshl_b32 s32, s3, 1
    s_add_u32 s32, s32, s36
    s_xor_b32 s33, s32, 1
    s_lshl_b32 s34, s16, 1
    s_add_u32 s34, s34, s37
    s_xor_b32 s35, s34, 1
    s_lshl_b32 s38, s3, 1
    s_add_u32 s38, s38, s16
    s_and_b32 s38, s38, {7*ROT4}
    s_mul_i32 s38, s38, 7
    s_lshr_b32 s38, s38, 1
    s_lshl_b32 s38, s38, 10
    """)
    for i in range(4): a(f"s_mul_i32 s{32+i}, s{32+i}, {112*1024}\n v_add_u32 v{28+i}, s{32+i}, v3")
    WIN=10
    def ld(ks):
        S=32+16*(ks%WIN)
        for i in range(4):
            a(f"buffer_load_dwordx4 v[{S+4*i}:{S+4*i+3}], v{28+i}, s[{4 if i<2 else 8}:{7 if i<2 else 11}], s38 offen")
        a(f"s_add_u32 s38, s38, 1024\n s_cmp_eq_u32 s38, {28*1024}\n s_cselect_b32 s38, 0, s38")
    for ks in range(WIN): ld(ks)
    a(f"""
    v_and_b32 v4, 31, v1
    v_lshrrev_b32 v5, 5, v1
    v_and_b32 v6, 1, v2
    v_lshl_add_u32 v4, v6, 5, v4
    s_lshl_b32 s36, s16, 6
    v_add_u32 v4, s36, v4
    v_lshrrev_b32 v6, 1, v2
    v_lshlrev_b32 v6, 5, v6
    v_lshl_add_u32 v6, v5, 2, v6
    s_lshl_b32 s36, s3, 6
    v_add_u32 v6, s36, v6
    v_mul_u32_u24 v7, {X2S}, v4
    v_lshl_add_u32 v7, v6, 1, v7
    v_and_b32 v8, 63, v6
    v_mul_u32_u24 v8, 144, v8
    v_and_b32 v9, 63, v4
    v_lshl_add_u32 v8, v9, 1, v8
    v_mul_u32_u24 v9, 96, v4
    v_lshlrev_b32 v10, 1, v4
    v_lshrrev_b32 v5, 3, v0
    v_and_b32 v6, 7, v0
    v_mul_u32_u24 v4, 144, v5
    v_lshl_add_u32 v4, v6, 4, v4
    v_lshlrev_b32 v5, 10, v5
    v_lshl_add_u32 v5, v6, 4, v5
    s_lshl_b32 s36, s3, 16
    s_lshl_b32 s37, s16, 7
    s_add_u32 s36, s36, s37
    s_add_u32 s37, s36, 0x8000
    v_lshlrev_b32 v11, 4, v1
    v_mul_u32_u24 v13, 12288, v2
    v_add_u32 v13, v13, v11
    v_xor_b32 v12, 1, v2
    v_mul_u32_u24 v12, 12288, v12
    v_add_u32 v12, v12, v11
    v_xor_b32 v14, 2, v2
    v_mul_u32_u24 v14, 12288, v14
    v_add_u32 v14, v14, v11
    v_xor_b32 v15, 3, v2
    v_mul_u32_u24 v15, 12288, v15
    v_add_u32 v15, v15, v11
    """)
    out=[4*WIN]; a.stamp(1)
    for ks in range(28):
        S=32+16*(ks%WIN)
        if ks==27: out[0]-=6
        a(f"s_waitcnt vmcnt({out[0]-4})"); out[0]-=4
        for lb in (1,0):
            for db in (1,0):
                q=2*lb+db; cc="0" if ks==0 else f"a[{16*q}:{16*q+15}]"
                a(f"v_mfma_f32_32x32x16_bf16 a[{16*q}:{16*q+15}], v[{S+4*lb}:{S+4*lb+3}], v[{S+8+4*db}:{S+11+4*db}], {cc}")
        if ks==0: a.stamp(2)
        if ks==13: a.stamp(3)
        if ks>=1 and ks-1+WIN<28: ld(ks-1+WIN); out[0]+=4
        if ks==17:
            for g in range(4): a(f"buffer_load_dwordx2 v[{16+2*g}:{17+2*g}], v7, s[20:23], 0 offen offset:{16*g}")
            a("buffer_load_dwordx4 v[24:27], v9, s[12:15], 0 offen offset:80\n buffer_load_ushort v3, v10, s[24:27], 0 offen"); ex=out[0]; out[0]+=6
    a.stamp(4); a("s_nop 9")
    for q in (3,2,1):
        for g in range(4): a(f"ds_write_b128 v{[0,12,14,15][q]}, a[{16*q+4*g}:{16*q+4*g+3}] offset:{4096*(q-1)+1024*g}")
    a("""
    v_add_f32 v24, v24, v25
    v_add_f32 v26, v26, v27
    v_add_f32 v24, v24, v26
    v_cvt_pk_bf16_f32 v24, v24, v24
    v_lshlrev_b32 v24, 16, v24
    v_lshlrev_b32 v28, 16, v3
    """)
    for r in range(16): a(f"v_accvgpr_read_b32 v{32+r}, a{r}")
    for i in range(8): a(f"v_lshlrev_b32 v{96+2*i}, 16, v{16+i}\n v_and_b32 v{97+2*i}, s17, v{16+i}")
    a("s_waitcnt lgkmcnt(0)\n s_barrier")
    for w in range(3):
        for g in range(4): a(f"ds_read_b128 v[{48+16*w+4*g}:{51+16*w+4*g}], v13 offset:{4096*w+1024*g}")
    for w in range(3):
        a(f"s_waitcnt lgkmcnt({8-4*w})")
        for r in range(0,16,2): a(f"v_pk_add_f32 v[{32+r}:{33+r}], v[{32+r}:{33+r}], v[{48+16*w+r}:{49+16*w+r}]")
    Y=list(range(32,48)); a.stamp(5)
    rnd(a,Y)
    for r in range(16): a(f"v_add_f32 v{32+r}, v{32+r}, v28")
    rnd(a,Y)
    for r in range(16): a(f"v_mul_f32 v{32+r}, v{32+r}, v24")
    rnd(a,Y)
    for r in range(16): a(f"v_add_f32 v{32+r}, v{32+r}, v{96+r}")
    for i in range(8): a(f"v_cvt_pk_bf16_f32 v{48+i}, v{32+2*i}, v{33+2*i}")
    for g in range(4):
        for r in range(4):
            a(f"ds_write_b16{'_d16_hi' if r&1 else ''} v8, v{48+2*g+r//2} offset:{49152+144*(8*g+r)}")
    a("s_waitcnt lgkmcnt(0)\n s_barrier")
    a(f"ds_read_b128 v[32:35], v4 offset:49152\n ds_read_b128 v[36:39], v4 offset:{49152+32*144}")
    a("s_waitcnt lgkmcnt(1)\n buffer_store_dwordx4 v[32:35], v5, s[28:31], s36 offen\n s_waitcnt lgkmcnt(0)\n buffer_store_dwordx4 v[36:39], v5, s[28:31], s37 offen")
    a.stamp(6); a("s_waitcnt vmcnt(0)") if STAMP else 0; a.stamp_end(3,7); a("K4_END:\n s_endpgm")
    return desc("k4_kernel",192,64)
```

```python
from common import *
from k2 import rnd, w2relayout
NLN=128; NMOD=192; NW2=64 if W2AT==1 else 0; NKG=512
K1_GRID=NLN+NMOD+NW2+NKG
K1_LDS=36864
import os
ORD1=os.environ.get('ORD1','LAmBn'); PRIO1=int(os.environ.get('PRIO1','0'))
def k1(a):
    a.begin("k1_kernel")
    a(f"""
    s_cmp_ge_u32 s2, {K1_GRID}
    s_cbranch_scc1 K1_END
    v_and_b32 v1, 63, v0
    v_lshrrev_b32 v2, 6, v0
    """)
    SEG={'K':(0,512),'L':(512,128),'M':(640,192),'A':(0,256),'B':(256,256),'m':(640,96),'n':(736,96),'l':(512,64),'j':(576,64)}
    pos=0; segs=[]
    for ch in ORD1: segs.append((pos,SEG[ch][0]-pos)); pos+=SEG[ch][1]
    assert pos==K1_GRID
    a(f"s_mov_b32 s3, {segs[0][1]}")
    for p,dl in segs[1:]: a(f"s_cmp_ge_u32 s2, {p}\n s_cselect_b32 s3, {dl}, s3")
    a(f"""
    s_add_u32 s2, s2, s3
    s_mov_b32 s3, s2
    s_cmp_lt_u32 s2, {NKG}
    s_cbranch_scc1 K1_KG
    s_sub_u32 s2, s2, {NKG}
    """)
    a(f"""
    s_cmp_ge_u32 s2, {NLN+NMOD}
    s_cbranch_scc1 K1_W2
    s_cmp_ge_u32 s2, {NLN}
    s_cbranch_scc1 K1_MOD
    K1_LN:
    """)
    if PRIO1: a("s_setprio 3")
    a("""
    """)
    a.stamp(0)
    a.srd(4,'x',2097152); a.srd(8,'ws',256*XTS,XT); a.srd_fin()
    a("""
    s_lshl_b32 s3, s2, 14
    v_lshlrev_b32 v3, 12, v2
    v_lshl_add_u32 v3, v1, 4, v3
    """)
    for r in range(4): a(f"buffer_load_dwordx4 v[{4+4*r}:{7+4*r}], v3, s[4:7], s3 offen offset:{1024*r}")
    a(f"""
    s_lshl_b32 s16, s2, 7
    v_mul_u32_u24 v3, 576, v1
    v_lshl_add_u32 v3, v2, 5, v3
    s_mov_b32 s17, 0xffff0000
    v_lshrrev_b32 v80, 3, v0
    v_mov_b32 v84, 0x3f803f80
    v_mov_b32 v36, 0
    v_mov_b32 v37, 0
    v_mov_b32 v38, 0
    v_mov_b32 v39, 0
    v_mov_b32 v72, 0
    v_mov_b32 v73, 0
    v_mov_b32 v74, 0
    v_mov_b32 v75, 0
    v_and_b32 v81, 7, v0
    v_mul_u32_u24 v82, 144, v80
    v_lshl_add_u32 v82, v81, 4, v82
    v_mul_u32_u24 v83, {XTS}, v80
    v_lshl_add_u32 v83, v81, 4, v83
    s_waitcnt vmcnt(0)
    """)
    a.stamp(1)
    for j in range(4):
        for r in range(4): a(f"v_dot2c_f32_bf16 v{36+r}, v{4+4*r+j}, v84\n v_dot2c_f32_bf16 v{72+r}, v{4+4*r+j}, v{4+4*r+j}")
    for r in range(4):
        for j in range(4):
            a(f"v_lshlrev_b32 v{40+8*r+2*j}, 16, v{4+4*r+j}")
            a(f"v_and_b32 v{41+8*r+2*j}, s17, v{4+4*r+j}")
    wavesum(a,[36,37,38,39,72,73,74,75],20)
    for r in range(4): a(f"v_mul_f32 v{36+r}, 0x3b000000, v{36+r}\n v_mul_f32 v{72+r}, 0x3b000000, v{72+r}")
    for r in range(4): a(f"v_fma_f32 v{72+r}, -v{36+r}, v{36+r}, v{72+r}")
    for r in range(4): a(f"v_max_f32 v{72+r}, 0, v{72+r}")
    for r in range(4): a(f"v_cvt_pk_bf16_f32 v{36+r}, v{36+r}, v{72+r}")
    for r in range(4): a(f"v_and_b32 v{72+r}, s17, v{36+r}\n v_lshlrev_b32 v{36+r}, 16, v{36+r}")
    for r in range(4): a(f"v_add_f32 v{72+r}, 0x3727c5ac, v{72+r}")
    for r in range(4): a(f"v_cvt_pk_bf16_f32 v{72+r}, v{72+r}, v{72+r}")
    for r in range(4): a(f"v_lshlrev_b32 v{72+r}, 16, v{72+r}")
    for r in range(4): a(f"v_sqrt_f32 v{72+r}, v{72+r}")
    for r in range(4): a(f"v_cvt_pk_bf16_f32 v{72+r}, v{72+r}, v{72+r}")
    for r in range(4): a(f"v_lshlrev_b32 v{72+r}, 16, v{72+r}")
    for r in range(4): a(f"v_rcp_f32 v{72+r}, v{72+r}")
    for r in range(4):
        for e in range(0,8,2): a(f"v_pk_add_f32 v[{40+8*r+e}:{41+8*r+e}], v[{40+8*r+e}:{41+8*r+e}], v[{36+(r&2)}:{37+(r&2)}] op_sel:[0,{r&1}] op_sel_hi:[1,{r&1}] neg_lo:[0,1] neg_hi:[0,1]")
    rnd(a,list(range(40,72)))
    for j in range(4):
        for r in range(4):
            a(f"v_pk_mul_f32 v[{40+8*r+2*j}:{41+8*r+2*j}], v[{40+8*r+2*j}:{41+8*r+2*j}], v[{72+(r&2)}:{73+(r&2)}] op_sel:[0,{r&1}] op_sel_hi:[1,{r&1}]")
        B=20+8*(j&1)
        for r in range(4): a(f"v_cvt_pk_bf16_f32 v{B+2*r+1}, v{40+8*r+2*j}, v{41+8*r+2*j}\n v_mov_b32 v{B+2*r}, v{4+4*r+j}")
        a(f"ds_write_b128 v3, v[{B}:{B+3}] offset:{144*j}\n ds_write_b128 v3, v[{B+4}:{B+7}] offset:{144*j+16}")
    a("s_waitcnt lgkmcnt(0)\n s_barrier")
    for i in range(8): a(f"ds_read_b128 v[{40+4*i}:{43+4*i}], v82 offset:{32*144*i}")
    for i in range(8):
        a(f"s_waitcnt lgkmcnt({7-i})\n buffer_store_dwordx4 v[{40+4*i}:{43+4*i}], v83, s[8:11], s16 offen\n s_add_u32 s16, s16, {32*XTS}")
    a.stamp(2); a("s_waitcnt vmcnt(0)") if STAMP else 0; a.stamp_end(4,3); a("s_endpgm")
    a("K1_W2:"); w2relayout(a, NLN+NMOD) if W2AT==1 else a("s_endpgm")
    a("K1_MOD:")
    a.srd(4,'wmod',3145728); a.srd(8,'c',1024); a.srd(12,'ws',49152,MODP); a.srd_fin()
    a(f"""
    s_sub_u32 s3, s2, {NLN}
    s_and_b32 s16, s3, 3
    s_lshr_b32 s17, s3, 2
    v_and_b32 v3, 7, v0
    v_lshrrev_b32 v4, 3, v0
    s_lshl_b32 s18, s16, 7
    v_add_u32 v5, s18, v4
    v_lshlrev_b32 v6, 1, v5
    v_mul_u32_u24 v5, 6144, v5
    v_lshl_add_u32 v5, v3, 4, v5
    s_lshl_b32 s19, s17, 7
    s_mov_b32 s21, 0xffff0000
    """)
    for i in range(4): a(f"buffer_load_ushort v{8+i}, v6, s[8:11], 0 offen offset:{64*i}")
    for i in range(4):
        a(f"buffer_load_dwordx4 v[{12+4*i}:{15+4*i}], v5, s[4:7], s19 offen")
        if i<3: a(f"s_add_u32 s19, s19, {32*6144}")
    a("s_waitcnt vmcnt(4)")
    for i in range(4): a(f"v_lshlrev_b32 v{8+i}, 16, v{8+i}")
    for i in range(4): a(f"v_mul_f32 v{28+i}, 0xbfb8aa3b, v{8+i}")
    for i in range(4): a(f"v_exp_f32 v{28+i}, v{28+i}")
    for i in range(4): a(f"v_add_f32 v{28+i}, 1.0, v{28+i}")
    for i in range(4): a(f"v_rcp_f32 v{28+i}, v{28+i}")
    for i in range(4): a(f"v_mul_f32 v{8+i}, v{8+i}, v{28+i}")
    for i in range(4): a(f"v_cvt_pk_bf16_f32 v{8+i}, v{8+i}, v{8+i}")
    for i in range(4): a(f"v_lshlrev_b32 v{8+i}, 16, v{8+i}")
    for e in range(8): a(f"v_mov_b32 v{32+e}, 0")
    for i in range(4):
        a(f"s_waitcnt vmcnt({3-i})")
        for j in range(4):
            a(f"v_lshlrev_b32 v28, 16, v{12+4*i+j}")
            a(f"v_and_b32 v29, s21, v{12+4*i+j}")
            a(f"v_fmac_f32 v{32+2*j}, v{8+i}, v28")
            a(f"v_fmac_f32 v{33+2*j}, v{8+i}, v29")
    a("""
    v_mul_u32_u24 v5, 272, v4
    v_lshl_add_u32 v5, v3, 5, v5
    ds_write_b128 v5, v[32:35]
    ds_write_b128 v5, v[36:39] offset:16
    v_mul_u32_u24 v6, 2176, v2
    v_lshl_add_u32 v6, v1, 2, v6
    s_waitcnt lgkmcnt(0)
    s_barrier
    """)
    for i in range(8): a(f"ds_read_b32 v{8+i}, v6 offset:{272*i}")
    a("s_waitcnt lgkmcnt(0)")
    for i in range(1,8): a(f"v_add_f32 v8, v8, v{8+i}")
    a("""
    v_lshlrev_b32 v6, 2, v0
    ds_write_b32 v6, v8 offset:8704
    v_lshlrev_b32 v6, 2, v1
    s_waitcnt lgkmcnt(0)
    s_barrier
    """)
    for i in range(4): a(f"ds_read_b32 v{8+i}, v6 offset:{8704+256*i}")
    a("""
    s_and_b32 s18, s17, 7
    s_mul_i32 s18, s18, 6144
    s_lshr_b32 s19, s17, 3
    s_lshl_b32 s19, s19, 4
    s_add_u32 s18, s18, s19
    s_lshl_b32 s19, s16, 2
    s_add_u32 s18, s18, s19
    v_mul_u32_u24 v7, 96, v1
    s_waitcnt lgkmcnt(0)
    v_add_f32 v8, v8, v9
    v_add_f32 v10, v10, v11
    v_add_f32 v8, v8, v10
    v_cmp_gt_u32 vcc, 64, v0
    s_and_saveexec_b64 s[22:23], vcc
    s_cbranch_execz K1_END
    buffer_store_dword v8, v7, s[12:15], s18 offen
    s_endpgm
    """)
    a("K1_KG0:\n s_mov_b32 s2, s3\n K1_KG:"); a.stamp(0)
    a("s_load_dwordx16 s[4:19], s[0:1], 0"); a.srd(32,'ws',512*RVS,RV)
    a(f"""
    s_lshl_b32 s36, s3, 8
    s_lshl_b32 s37, s3, 1
    v_and_b32 v3, 127, v0
    v_lshl_add_u32 v4, v3, 1, s36
    v_mov_b32 v5, s37
    s_waitcnt lgkmcnt(0)
    """)
    for i in range(6): a(f"global_load_ushort v{8+i}, v4, s[{6+2*i}:{7+2*i}]")
    a("global_load_ushort v14, v5, s[18:19]"); a.srd_fin()
    TOFF=18432; a.stamp(1)
    a("v_lshlrev_b32 v6, 3, v0\n v_sub_u32 v6, 2047, v6")
    for e in range(8): a(f"v_subrev_u32 v{80+e}, {e}, v6")
    for e in range(8): a(f"v_cvt_f32_u32 v{88+e}, v{80+e}")
    for e in range(8): a(f"v_cvt_pk_bf16_f32 v{88+e}, v{88+e}, v{88+e}")
    for e in range(8): a(f"v_and_b32 v{88+e}, 0xffff, v{88+e}")
    for e in range(8): a(f"v_subrev_u32 v{88+e}, {0x4300-128}, v{88+e}")
    a("v_cmp_lt_u32 vcc, 127, v6\n s_nop 1")
    for e in range(8): a(f"v_cndmask_b32 v{80+e}, v{80+e}, v{88+e}, vcc")
    for e in range(8): a(f"v_lshlrev_b32 v{80+e}, 1, v{80+e}")
    a("""
    v_and_b32 v6, 15, v1
    v_cvt_f32_u32 v6, v6
    v_lshrrev_b32 v7, 4, v1
    v_lshlrev_b32 v7, 6, v7
    v_lshl_add_u32 v7, v2, 9, v7
    s_waitcnt vmcnt(0)
    """)
    a.stamp(2)
    for i in range(7): a(f"v_lshlrev_b32 v{8+i}, 16, v{8+i}")
    a("""
    v_mul_f32 v14, 0x3fb8aa3b, v14
    v_exp_f32 v14, v14
    s_nop 0
    v_cvt_pk_bf16_f32 v14, v14, v14
    v_lshlrev_b32 v14, 16, v14
    v_mul_f32 v16, v14, v8
    v_mul_f32 v17, v14, v9
    v_mul_f32 v10, v14, v10
    v_mul_f32 v11, v14, v11
    v_mul_f32 v16, 0x3fb8aa3b, v16
    v_mul_f32 v17, 0.15915494, v17
    v_mul_f32 v18, v12, v10
    v_mul_f32 v19, v12, v11
    v_fma_f32 v18, -v13, v11, v18
    v_fma_f32 v19, v13, v10, v19
    v_lshlrev_b32 v4, 4, v3
    ds_write_b128 v4, v[16:19]
    v_mov_b32 v96, v16
    v_mov_b32 v97, v17
    v_mov_b32 v98, v18
    v_mov_b32 v99, v19
    s_waitcnt lgkmcnt(0)
    s_barrier
    """)
    a.stamp(3)
    for m in range(8): a(f"ds_read_b128 v[{8+4*m}:{11+4*m}], v7 offset:{(m>>2)*256+(m&3)*16}")
    a("""
    v_mul_f32 v100, 0x45000000, v96
    v_mul_f32 v101, 0x45000000, v97
    v_exp_f32 v100, v100
    v_fract_f32 v101, v101
    v_cos_f32 v102, v101
    v_sin_f32 v101, v101
    s_nop 0
    v_mul_f32 v102, v98, v102
    v_fma_f32 v102, -v99, v101, v102
    v_mul_f32 v102, v100, v102
    """)
    wavesum(a,[102],40)
    a(f"v_lshlrev_b32 v4, 2, v2\n ds_write_b32 v4, v102 offset:{TOFF+1536}")
    for ks in range(2):
        a(f"s_waitcnt lgkmcnt({1-ks})")
        M=[8+16*ks+4*u for u in range(4)]; T=[72,76,88,92]
        for u in range(4): a(f"v_pk_mul_f32 v[{T[u]}:{T[u]+1}], v[{M[u]}:{M[u]+1}], v[6:7] op_sel_hi:[1,0]")
        for u in range(4): a(f"v_exp_f32 v{T[u]}, v{T[u]}\n v_fract_f32 v{T[u]+1}, v{T[u]+1}")
        for u in range(4): a(f"v_cos_f32 v{T[u]+2}, v{T[u]+1}\n v_sin_f32 v{T[u]+3}, v{T[u]+1}")
        for u in range(4): a(f"v_pk_mul_f32 v[{T[u]}:{T[u]+1}], v[{T[u]+2}:{T[u]+3}], v[{T[u]}:{T[u]+1}] op_sel_hi:[1,0]")
        for st in range(8):
            if st<4:
                for u in range(4): a(f"v_cvt_pk_bf16_f32 v{40+4*st+u}, v{T[u]}, v{T[u]+1}")
            else:
                for u in range(4): a(f"v_pk_mul_f32 v[{T[u]+2}:{T[u]+3}], v[{M[u]+2}:{M[u]+3}], v[{T[u]}:{T[u]+1}] op_sel_hi:[0,1]")
                for u in range(4): a(f"v_pk_fma_f32 v[{T[u]+2}:{T[u]+3}], v[{M[u]+2}:{M[u]+3}], v[{T[u]}:{T[u]+1}], v[{T[u]+2}:{T[u]+3}] op_sel:[1,1,0] op_sel_hi:[1,0,1] neg_lo:[0,1,0]")
                for u in range(4): a(f"v_cvt_pk_bf16_f32 v{56+4*(st-4)+u}, v{T[u]+2}, -v{T[u]+3}")
            if st<7:
                for u in range(4): a(f"v_pk_mul_f32 v[{T[u]+2}:{T[u]+3}], v[{T[u]}:{T[u]+1}], v[{T[u]}:{T[u]+1}] op_sel_hi:[0,1]")
                for u in range(4): a(f"v_pk_fma_f32 v[{T[u]}:{T[u]+1}], v[{T[u]}:{T[u]+1}], v[{T[u]}:{T[u]+1}], v[{T[u]+2}:{T[u]+3}] op_sel:[1,1,0] op_sel_hi:[1,0,1] neg_lo:[0,1,0]")
        a("s_nop 1")
        for s in range(4):
            c = "0" if ks==0 else f"v[{96+4*s}:{99+4*s}]"
            a(f"v_mfma_f32_16x16x32_bf16 v[{96+4*s}:{99+4*s}], v[{40+4*s}:{43+4*s}], v[{56+4*s}:{59+4*s}], {c}")
    a(f"""
    v_and_b32 v4, 15, v1
    v_lshlrev_b32 v4, 6, v4
    v_lshrrev_b32 v5, 4, v1
    v_lshl_add_u32 v4, v5, 4, v4
    v_lshl_add_u32 v4, v2, 12, v4
    v_lshlrev_b32 v5, 4, v0
    s_nop 4
    """)
    a.stamp(4)
    for s in range(4): a(f"ds_write_b128 v4, v[{96+4*s}:{99+4*s}] offset:{2048+1024*s}")
    a("s_waitcnt lgkmcnt(0)\n s_barrier")
    for w in range(4): a(f"ds_read_b128 v[{8+4*w}:{11+4*w}], v5 offset:{2048+4096*w}")
    a(f"v_mov_b32 v26, 0\n ds_read_b64 v[24:25], v26 offset:{TOFF+1536}")
    a(f"""
    v_lshlrev_b32 v4, 3, v1
    v_lshl_add_u32 v4, v2, 8, v4
    v_cmp_gt_u32 vcc, 64, v0
    v_cmp_lt_u32 s[40:41], 31, v1
    s_or_b64 vcc, vcc, s[40:41]
    s_waitcnt lgkmcnt(0)
    """)
    for e in range(4): a(f"v_add_f32 v{8+e}, v{8+e}, v{12+e}\n v_add_f32 v{16+e}, v{16+e}, v{20+e}")
    for e in range(4): a(f"v_add_f32 v{8+e}, v{8+e}, v{16+e}")
    a(f"""
    v_add_f32 v24, v24, v25
    v_cvt_pk_bf16_f32 v8, v8, v9
    v_cvt_pk_bf16_f32 v9, v10, v11
    v_cvt_pk_bf16_f32 v24, v24, v24
    ds_write_b32 v26, v24 offset:{TOFF+1280}
    s_and_saveexec_b64 s[42:43], vcc
    ds_write_b64 v4, v[8:9] offset:{TOFF}
    s_mov_b64 exec, s[42:43]
    s_waitcnt lgkmcnt(0)
    s_barrier
    """)
    a.stamp(5)
    for e in range(8): a(f"ds_read_u16 v{16+e}, v{80+e} offset:{TOFF}")
    a(f"""
    s_mul_i32 s36, s3, {RVS}
    v_mov_b32 v12, 0
    v_mov_b32 v13, 0
    v_mov_b32 v14, 0
    v_mov_b32 v15, 0
    s_waitcnt lgkmcnt(0)
    v_lshl_or_b32 v8, v17, 16, v16
    v_lshl_or_b32 v9, v19, 16, v18
    v_lshl_or_b32 v10, v21, 16, v20
    v_lshl_or_b32 v11, v23, 16, v22
    buffer_store_dwordx4 v[8:11], v5, s[32:35], s36 offen
    """)
    a.stamp(6); a("s_waitcnt vmcnt(0)") if STAMP else 0; a.stamp_end(0,7)
    a(f"""
    v_cmp_gt_u32 vcc, 8, v0
    s_and_saveexec_b64 s[42:43], vcc
    s_cbranch_execz K1_END
    s_add_u32 s36, s36, 4096
    buffer_store_dwordx4 v[12:15], v5, s[32:35], s36 offen
    K1_END:
    s_endpgm
    """)
    return desc("k1_kernel",112)
```

```python
from common import *
from k2 import rnd
K3_LDS=65536+1024+2048
K4_LDS=49152+64*144
def wgmap(a):
    a("""
    s_and_b32 s3, s2, 7
    s_lshl_b32 s3, s3, 2
    s_bfe_u32 s16, s2, 0x20003
    s_or_b32 s3, s3, s16
    s_lshr_b32 s16, s2, 5
    v_and_b32 v1, 63, v0
    v_lshrrev_b32 v2, 6, v0
    s_mov_b32 s17, 0xffff0000
    v_readfirstlane_b32 s18, v2
    """)
def k3(a):
    a.begin("k3_kernel")
    a("s_cmp_ge_u32 s2, 256\n s_cbranch_scc1 K3_END"); a.stamp(0)
    a.srd(4,'ws',512*X2S,X2T); a.srd(8,'ws',1835008,W1F); a.srd(12,'ws',28672,CSB); a.srd(20,'ws',7340032,HID)
    wgmap(a)
    a("s_bfe_u32 s3, s2, 0x20001\n s_lshl_b32 s3, s3, 3\n s_bfe_u32 s16, s2, 0x30003\n s_or_b32 s3, s3, s16\n s_and_b32 s16, s2, 1\n s_lshl_b32 s16, s16, 2\n s_lshr_b32 s19, s2, 6\n s_or_b32 s16, s16, s19")
    a.srd_fin()
    a(f"""
    v_lshrrev_b32 v3, 3, v1
    v_and_b32 v4, 7, v1
    v_lshlrev_b32 v5, 1, v3
    v_and_b32 v5, 4, v5
    v_xor_b32 v4, v4, v5
    v_lshlrev_b32 v4, 4, v4
    v_mul_u32_u24 v3, {X2S}, v3
    v_add_u32 v4, v3, v4
    s_lshl_b32 s19, s3, 7
    s_mul_i32 s24, s18, {8*X2S}
    s_add_u32 s19, s19, s24
    s_lshl_b32 s25, s18, 10
    s_lshl_b32 s29, s16, 1
    s_add_u32 s29, s29, s3
    s_and_b32 s29, s29, {7*ROT3}
    v_lshlrev_b32 v5, 4, v1
    s_mul_i32 s26, s16, 7
    s_add_u32 s26, s26, s18
    s_lshl_b32 s27, s26, 15
    v_lshrrev_b32 v6, 4, v1
    v_and_b32 v7, 1, v6
    v_lshrrev_b32 v6, 1, v6
    v_bfe_u32 v8, v1, 2, 2
    v_and_b32 v9, 3, v1
    v_lshlrev_b32 v9, 3, v9
    v_lshl_add_u32 v9, v7, 5, v9
    v_lshl_add_u32 v9, v8, 7, v9
    v_lshl_add_u32 v9, v6, 10, v9
    v_lshrrev_b32 v8, 1, v8
    v_lshl_add_u32 v10, v8, 6, v9
    v_xor_b32 v11, 64, v10
    s_cmp_eq_u32 s18, 7
    s_cbranch_scc1 K3_ST
    """)
    PF=3
    def issue(c, w):
        a(f"s_add_u32 m0, s25, {c*8192}\n s_mul_i32 s28, s29, {64*X2S}\n s_add_u32 s28, s28, s19")
        a("buffer_load_dwordx4 v4, s[4:7], s28 offen lds")
        if w:
            a("s_lshl_b32 s28, s29, 12\n s_add_u32 s28, s28, s27")
            for k in range(4):
                R=64+16*(c&3)+4*k
                a(f"buffer_load_dwordx4 v[{R}:{R+3}], v5, s[8:11], s28 offen offset:{1024*k}")
        a("s_add_u32 s29, s29, 1\n s_and_b32 s29, s29, 7")
    def xload(ks):
        S=24+8*(ks&3)
        for lb in range(2):
            for rd in range(2): a(f"ds_read_b64_tr_b16 v[{S+4*lb+2*rd}:{S+4*lb+2*rd+1}], v{10+lb} offset:{2048*ks+512*rd}")
    def loop(body, w):
        n=5 if w else 1
        for c in range(PF): issue(c,w)
        a.stamp(1)
        for c in range(8):
            later=min(PF-1,7-c)*n
            a(f"s_waitcnt vmcnt({later+n-1})\n s_barrier")
            if c&1==0: a.stamp(2+c//2)
            for k in range(4): xload(4*c+k)
            if w: a(f"s_waitcnt vmcnt({later})")
            for k in range(4):
                a(f"s_waitcnt lgkmcnt({4*(3-k)})")
                body(4*c+k)
            if c+PF<8: issue(c+PF,w)
    def mm(ks):
        S=24+8*(ks&3); R=64+4*(ks&15)
        for lb in range(2):
            cc="0" if ks==0 else f"v[{192+16*lb}:{207+16*lb}]"
            a(f"v_mfma_f32_32x32x16_bf16 v[{192+16*lb}:{207+16*lb}], v[{R}:{R+3}], v[{S+4*lb}:{S+4*lb+3}], {cc}")
    a("v_and_b32 v12, 31, v1\n v_lshlrev_b32 v13, 4, v12\n s_lshl_b32 s28, s26, 9\n buffer_load_dwordx4 v[16:19], v13, s[12:15], s28 offen")
    loop(mm, True); a.stamp(6)
    a("""
    v_add_f32 v16, v16, v17
    v_add_f32 v17, v18, v19
    s_lshl_b32 s28, s18, 8
    s_add_u32 s28, s28, 0x10400
    v_lshl_add_u32 v13, v12, 2, s28
    ds_write2_b32 v13, v16, v17 offset1:32
    v_lshl_add_u32 v13, v6, 4, s28
    s_waitcnt lgkmcnt(0)
    """)
    for g in range(4): a(f"ds_read_b128 v[{224+4*g}:{227+4*g}], v13 offset:{32*g}\n ds_read_b128 v[{240+4*g}:{243+4*g}], v13 offset:{128+32*g}")
    a(f"""
    v_and_b32 v12, 31, v1
    v_lshlrev_b32 v12, 3, v12
    v_add_u32 v12, 0x10000, v12
    s_barrier
    """)
    for lb in range(2):
        for hf in range(2): a(f"ds_read_b64 v[{24+4*lb+2*hf}:{25+4*lb+2*hf}], v12 offset:{512*lb+256*hf}")
    a("s_waitcnt lgkmcnt(0)")
    for lb in range(2):
        b=24+4*lb
        a(f"""
        v_add_f32 v{b}, v{b}, v{b+2}
        v_add_f32 v{b+1}, v{b+1}, v{b+3}
        v_mul_f32 v{b}, 0x3b000000, v{b}
        v_mul_f32 v{b+1}, 0x3b000000, v{b+1}
        v_fma_f32 v{b+1}, -v{b}, v{b}, v{b+1}
        v_max_f32 v{b+1}, 0, v{b+1}
        v_cvt_pk_bf16_f32 v{b}, v{b}, v{b+1}
        v_and_b32 v{b+1}, s17, v{b}
        v_lshlrev_b32 v{b}, 16, v{b}
        v_add_f32 v{b+1}, 0x3727c5ac, v{b+1}
        v_cvt_pk_bf16_f32 v{b+1}, v{b+1}, v{b+1}
        v_lshlrev_b32 v{b+1}, 16, v{b+1}
        v_sqrt_f32 v{b+1}, v{b+1}
        s_nop 0
        v_cvt_pk_bf16_f32 v{b+1}, v{b+1}, v{b+1}
        v_lshlrev_b32 v{b+1}, 16, v{b+1}
        v_rcp_f32 v{b+1}, v{b+1}
        """)
    a(f"""
    s_mul_i32 s27, s3, {2*112*1024}
    s_lshl_b32 s28, s26, 11
    s_add_u32 s27, s27, s28
    s_waitcnt vmcnt(0)
    """)
    for lb in range(2):
        b=24+4*lb; A=192+16*lb
        for r in range(16): a(f"v_fma_f32 v{A+r}, -v{b}, v{224+r}, v{A+r}")
        for r in range(16): a(f"v_fma_f32 v{A+r}, v{A+r}, v{b+1}, v{240+r}")
        for r in range(16): a(f"v_max_f32 v{A+r}, 0, v{A+r}")
        for r in range(16): a(f"v_mul_f32 v{A+r}, v{A+r}, v{A+r}")
        for r in range(8): a(f"v_cvt_pk_bf16_f32 v{64+8*lb+r}, v{A+2*r}, v{A+2*r+1}")
        for sp in range(2): a(f"buffer_store_dwordx4 v[{64+8*lb+4*sp}:{67+8*lb+4*sp}], v5, s[20:23], s27 offen offset:{1024*sp}")
        if lb==0: a(f"s_add_u32 s27, s27, {112*1024}")
    a.stamp(7); a("s_waitcnt vmcnt(0)") if STAMP else 0; a.stamp_end(2,8); a("s_endpgm\nK3_ST:")
    a("v_mov_b32 v12, 0x3f803f80")
    for i in range(8): a(f"v_mov_b32 v{16+i}, 0")
    def st(ks):
        S=24+8*(ks&3)
        for j in range(4):
            for lb in range(2):
                a(f"v_dot2c_f32_bf16 v{16+4*lb+2*(j&1)}, v{S+4*lb+j}, v12")
                a(f"v_dot2c_f32_bf16 v{17+4*lb+2*(j&1)}, v{S+4*lb+j}, v{S+4*lb+j}")
    loop(st, False)
    a(f"""
    v_lshlrev_b32 v12, 3, v1
    v_add_u32 v12, 0x10000, v12
    s_nop 2
    v_add_f32 v16, v16, v18
    v_add_f32 v17, v17, v19
    v_add_f32 v20, v20, v22
    v_add_f32 v21, v21, v23
    ds_write_b64 v12, v[16:17]
    ds_write_b64 v12, v[20:21] offset:512
    s_waitcnt lgkmcnt(0)
    s_barrier
    K3_END:
    s_endpgm
    """)
    return desc("k3_kernel",256)
def k4(a):
    a.begin("k4_kernel")
    a("s_cmp_ge_u32 s2, 256\n s_cbranch_scc1 K4_END"); a.stamp(0)
    a.srd(4,'ws',7340032,HID); a.srd(8,'ws',1835008,W2F); a.srd(12,'ws',49152,MODP); a.srd(20,'ws',512*X2S,X2T)
    a.srd(24,'b2',1024); a.srd(28,'out',2097152)
    wgmap(a)
    a.srd_fin()
    a(f"""
    v_mul_u32_u24 v3, {28*1024}, v2
    v_lshl_add_u32 v3, v1, 4, v3
    s_lshr_b32 s36, s18, 1
    s_and_b32 s37, s18, 1
    s_lshl_b32 s32, s3, 1
    s_add_u32 s32, s32, s36
    s_xor_b32 s33, s32, 1
    s_lshl_b32 s34, s16, 1
    s_add_u32 s34, s34, s37
    s_xor_b32 s35, s34, 1
    s_lshl_b32 s38, s3, 1
    s_add_u32 s38, s38, s16
    s_and_b32 s38, s38, {7*ROT4}
    s_mul_i32 s38, s38, 7
    s_lshr_b32 s38, s38, 1
    s_lshl_b32 s38, s38, 10
    """)
    for i in range(4): a(f"s_mul_i32 s{32+i}, s{32+i}, {112*1024}\n v_add_u32 v{28+i}, s{32+i}, v3")
    WIN=10
    def ld(ks):
        S=32+16*(ks%WIN)
        for i in range(4):
            a(f"buffer_load_dwordx4 v[{S+4*i}:{S+4*i+3}], v{28+i}, s[{4 if i<2 else 8}:{7 if i<2 else 11}], s38 offen")
        a(f"s_add_u32 s38, s38, 1024\n s_cmp_eq_u32 s38, {28*1024}\n s_cselect_b32 s38, 0, s38")
    for ks in range(WIN): ld(ks)
    a(f"""
    v_and_b32 v4, 31, v1
    v_lshrrev_b32 v5, 5, v1
    v_and_b32 v6, 1, v2
    v_lshl_add_u32 v4, v6, 5, v4
    s_lshl_b32 s36, s16, 6
    v_add_u32 v4, s36, v4
    v_lshrrev_b32 v6, 1, v2
    v_lshlrev_b32 v6, 5, v6
    v_lshl_add_u32 v6, v5, 2, v6
    s_lshl_b32 s36, s3, 6
    v_add_u32 v6, s36, v6
    v_mul_u32_u24 v7, {X2S}, v4
    v_lshl_add_u32 v7, v6, 1, v7
    v_and_b32 v8, 63, v6
    v_mul_u32_u24 v8, 144, v8
    v_and_b32 v9, 63, v4
    v_lshl_add_u32 v8, v9, 1, v8
    v_mul_u32_u24 v9, 96, v4
    v_lshlrev_b32 v10, 1, v4
    v_lshrrev_b32 v5, 3, v0
    v_and_b32 v6, 7, v0
    v_mul_u32_u24 v4, 144, v5
    v_lshl_add_u32 v4, v6, 4, v4
    v_lshlrev_b32 v5, 10, v5
    v_lshl_add_u32 v5, v6, 4, v5
    s_lshl_b32 s36, s3, 16
    s_lshl_b32 s37, s16, 7
    s_add_u32 s36, s36, s37
    s_add_u32 s37, s36, 0x8000
    v_lshlrev_b32 v11, 4, v1
    v_mul_u32_u24 v13, 12288, v2
    v_add_u32 v13, v13, v11
    v_xor_b32 v12, 1, v2
    v_mul_u32_u24 v12, 12288, v12
    v_add_u32 v12, v12, v11
    v_xor_b32 v14, 2, v2
    v_mul_u32_u24 v14, 12288, v14
    v_add_u32 v14, v14, v11
    v_xor_b32 v15, 3, v2
    v_mul_u32_u24 v15, 12288, v15
    v_add_u32 v15, v15, v11
    """)
    out=[4*WIN]; a.stamp(1)
    for ks in range(28):
        S=32+16*(ks%WIN)
        if ks==27: out[0]-=6
        a(f"s_waitcnt vmcnt({out[0]-4})"); out[0]-=4
        for lb in (1,0):
            for db in (1,0):
                q=2*lb+db; cc="0" if ks==0 else f"a[{16*q}:{16*q+15}]"
                a(f"v_mfma_f32_32x32x16_bf16 a[{16*q}:{16*q+15}], v[{S+4*lb}:{S+4*lb+3}], v[{S+8+4*db}:{S+11+4*db}], {cc}")
        if ks==0: a.stamp(2)
        if ks==13: a.stamp(3)
        if ks>=1 and ks-1+WIN<28: ld(ks-1+WIN); out[0]+=4
        if ks==17:
            for g in range(4): a(f"buffer_load_dwordx2 v[{16+2*g}:{17+2*g}], v7, s[20:23], 0 offen offset:{16*g}")
            a("buffer_load_dwordx4 v[24:27], v9, s[12:15], 0 offen offset:80\n buffer_load_ushort v3, v10, s[24:27], 0 offen"); ex=out[0]; out[0]+=6
    a.stamp(4); a("s_nop 9")
    for q in (3,2,1):
        for g in range(4): a(f"ds_write_b128 v{[0,12,14,15][q]}, a[{16*q+4*g}:{16*q+4*g+3}] offset:{4096*(q-1)+1024*g}")
    a("""
    v_add_f32 v24, v24, v25
    v_add_f32 v26, v26, v27
    v_add_f32 v24, v24, v26
    v_cvt_pk_bf16_f32 v24, v24, v24
    v_lshlrev_b32 v24, 16, v24
    v_lshlrev_b32 v28, 16, v3
    """)
    for r in range(16): a(f"v_accvgpr_read_b32 v{32+r}, a{r}")
    for i in range(8): a(f"v_lshlrev_b32 v{96+2*i}, 16, v{16+i}\n v_and_b32 v{97+2*i}, s17, v{16+i}")
    a("s_waitcnt lgkmcnt(0)\n s_barrier")
    for w in range(3):
        for g in range(4): a(f"ds_read_b128 v[{48+16*w+4*g}:{51+16*w+4*g}], v13 offset:{4096*w+1024*g}")
    for w in range(3):
        a(f"s_waitcnt lgkmcnt({8-4*w})")
        for r in range(0,16,2): a(f"v_pk_add_f32 v[{32+r}:{33+r}], v[{32+r}:{33+r}], v[{48+16*w+r}:{49+16*w+r}]")
    Y=list(range(32,48)); a.stamp(5)
    rnd(a,Y)
    for r in range(0,16,2): a(f"v_pk_add_f32 v[{32+r}:{33+r}], v[{32+r}:{33+r}], v[28:29] op_sel_hi:[1,0]")
    rnd(a,Y)
    for r in range(0,16,2): a(f"v_pk_mul_f32 v[{32+r}:{33+r}], v[{32+r}:{33+r}], v[24:25] op_sel_hi:[1,0]")
    rnd(a,Y)
    for r in range(0,16,2): a(f"v_pk_add_f32 v[{32+r}:{33+r}], v[{32+r}:{33+r}], v[{96+r}:{97+r}]")
    for i in range(8): a(f"v_cvt_pk_bf16_f32 v{48+i}, v{32+2*i}, v{33+2*i}")
    for g in range(4):
        for r in range(4):
            a(f"ds_write_b16{'_d16_hi' if r&1 else ''} v8, v{48+2*g+r//2} offset:{49152+144*(8*g+r)}")
    a("s_waitcnt lgkmcnt(0)\n s_barrier")
    a(f"ds_read_b128 v[32:35], v4 offset:49152\n ds_read_b128 v[36:39], v4 offset:{49152+32*144}")
    a("s_waitcnt lgkmcnt(1)\n buffer_store_dwordx4 v[32:35], v5, s[28:31], s36 offen\n s_waitcnt lgkmcnt(0)\n buffer_store_dwordx4 v[36:39], v5, s[28:31], s37 offen")
    a.stamp(6); a("s_waitcnt vmcnt(0)") if STAMP else 0; a.stamp_end(3,7); a("K4_END:\n s_endpgm")
    return desc("k4_kernel",192,64)
```

```python
from common import *
from k2 import rnd
K3_LDS=65536+1024+2048
K4_LDS=49152+64*144
def wgmap(a):
    a("""
    s_and_b32 s3, s2, 7
    s_lshl_b32 s3, s3, 2
    s_bfe_u32 s16, s2, 0x20003
    s_or_b32 s3, s3, s16
    s_lshr_b32 s16, s2, 5
    v_and_b32 v1, 63, v0
    v_lshrrev_b32 v2, 6, v0
    s_mov_b32 s17, 0xffff0000
    v_readfirstlane_b32 s18, v2
    """)
def k3(a):
    a.begin("k3_kernel")
    a("s_cmp_ge_u32 s2, 256\n s_cbranch_scc1 K3_END"); a.stamp(0)
    a.srd(4,'ws',512*X2S,X2T); a.srd(8,'ws',1835008,W1F); a.srd(12,'ws',28672,CSB); a.srd(20,'ws',7340032,HID)
    wgmap(a)
    a("s_bfe_u32 s3, s2, 0x20001\n s_lshl_b32 s3, s3, 3\n s_bfe_u32 s16, s2, 0x30003\n s_or_b32 s3, s3, s16\n s_and_b32 s16, s2, 1\n s_lshl_b32 s16, s16, 2\n s_lshr_b32 s19, s2, 6\n s_or_b32 s16, s16, s19")
    a.srd_fin()
    a(f"""
    v_lshrrev_b32 v3, 3, v1
    v_and_b32 v4, 7, v1
    v_lshlrev_b32 v5, 1, v3
    v_and_b32 v5, 4, v5
    v_xor_b32 v4, v4, v5
    v_lshlrev_b32 v4, 4, v4
    v_mul_u32_u24 v3, {X2S}, v3
    v_add_u32 v4, v3, v4
    s_lshl_b32 s19, s3, 7
    s_mul_i32 s24, s18, {8*X2S}
    s_add_u32 s19, s19, s24
    s_lshl_b32 s25, s18, 10
    s_lshl_b32 s29, s16, 1
    s_add_u32 s29, s29, s3
    s_and_b32 s29, s29, {7*ROT3}
    v_lshlrev_b32 v5, 4, v1
    s_mul_i32 s26, s16, 7
    s_add_u32 s26, s26, s18
    s_lshl_b32 s27, s26, 15
    v_lshrrev_b32 v6, 4, v1
    v_and_b32 v7, 1, v6
    v_lshrrev_b32 v6, 1, v6
    v_bfe_u32 v8, v1, 2, 2
    v_and_b32 v9, 3, v1
    v_lshlrev_b32 v9, 3, v9
    v_lshl_add_u32 v9, v7, 5, v9
    v_lshl_add_u32 v9, v8, 7, v9
    v_lshl_add_u32 v9, v6, 10, v9
    v_lshrrev_b32 v8, 1, v8
    v_lshl_add_u32 v10, v8, 6, v9
    v_xor_b32 v11, 64, v10
    s_cmp_eq_u32 s18, 7
    s_cbranch_scc1 K3_ST
    """)
    PF=3
    def issue(c, w):
        a(f"s_add_u32 m0, s25, {c*8192}\n s_mul_i32 s28, s29, {64*X2S}\n s_add_u32 s28, s28, s19")
        a("buffer_load_dwordx4 v4, s[4:7], s28 offen lds")
        if w:
            a("s_lshl_b32 s28, s29, 12\n s_add_u32 s28, s28, s27")
            for k in range(4):
                R=64+16*(c&3)+4*k
                a(f"buffer_load_dwordx4 v[{R}:{R+3}], v5, s[8:11], s28 offen offset:{1024*k}")
        a("s_add_u32 s29, s29, 1\n s_and_b32 s29, s29, 7")
    def xload(ks):
        S=24+8*(ks&3)
        for lb in range(2):
            for rd in range(2): a(f"ds_read_b64_tr_b16 v[{S+4*lb+2*rd}:{S+4*lb+2*rd+1}], v{10+lb} offset:{2048*ks+512*rd}")
    def loop(body, w):
        n=5 if w else 1
        for c in range(PF): issue(c,w)
        a.stamp(1)
        for c in range(8):
            later=min(PF-1,7-c)*n
            a(f"s_waitcnt vmcnt({later+n-1})\n s_barrier")
            if c&1==0: a.stamp(2+c//2)
            for k in range(4): xload(4*c+k)
            if w: a(f"s_waitcnt vmcnt({later})")
            for k in range(4):
                a(f"s_waitcnt lgkmcnt({4*(3-k)})")
                body(4*c+k)
            if c+PF<8: issue(c+PF,w)
    def mm(ks):
        S=24+8*(ks&3); R=64+4*(ks&15)
        for lb in range(2):
            cc="0" if ks==0 else f"v[{192+16*lb}:{207+16*lb}]"
            a(f"v_mfma_f32_32x32x16_bf16 v[{192+16*lb}:{207+16*lb}], v[{R}:{R+3}], v[{S+4*lb}:{S+4*lb+3}], {cc}")
    a("v_and_b32 v12, 31, v1\n v_lshlrev_b32 v13, 4, v12\n s_lshl_b32 s28, s26, 9\n buffer_load_dwordx4 v[16:19], v13, s[12:15], s28 offen")
    loop(mm, True); a.stamp(6)
    a("""
    v_add_f32 v16, v16, v17
    v_add_f32 v17, v18, v19
    s_lshl_b32 s28, s18, 8
    s_add_u32 s28, s28, 0x10400
    v_lshl_add_u32 v13, v12, 2, s28
    ds_write2_b32 v13, v16, v17 offset1:32
    v_lshl_add_u32 v13, v6, 4, s28
    s_waitcnt lgkmcnt(0)
    """)
    for g in range(4): a(f"ds_read_b128 v[{224+4*g}:{227+4*g}], v13 offset:{32*g}\n ds_read_b128 v[{240+4*g}:{243+4*g}], v13 offset:{128+32*g}")
    a(f"""
    v_and_b32 v12, 31, v1
    v_lshlrev_b32 v12, 3, v12
    v_add_u32 v12, 0x10000, v12
    s_barrier
    """)
    for lb in range(2):
        for hf in range(2): a(f"ds_read_b64 v[{24+4*lb+2*hf}:{25+4*lb+2*hf}], v12 offset:{512*lb+256*hf}")
    a("s_waitcnt lgkmcnt(0)")
    for lb in range(2):
        b=24+4*lb
        a(f"""
        v_add_f32 v{b}, v{b}, v{b+2}
        v_add_f32 v{b+1}, v{b+1}, v{b+3}
        v_mul_f32 v{b}, 0x3b000000, v{b}
        v_mul_f32 v{b+1}, 0x3b000000, v{b+1}
        v_fma_f32 v{b+1}, -v{b}, v{b}, v{b+1}
        v_max_f32 v{b+1}, 0, v{b+1}
        v_cvt_pk_bf16_f32 v{b}, v{b}, v{b+1}
        v_and_b32 v{b+1}, s17, v{b}
        v_lshlrev_b32 v{b}, 16, v{b}
        v_add_f32 v{b+1}, 0x3727c5ac, v{b+1}
        v_cvt_pk_bf16_f32 v{b+1}, v{b+1}, v{b+1}
        v_lshlrev_b32 v{b+1}, 16, v{b+1}
        v_sqrt_f32 v{b+1}, v{b+1}
        s_nop 0
        v_cvt_pk_bf16_f32 v{b+1}, v{b+1}, v{b+1}
        v_lshlrev_b32 v{b+1}, 16, v{b+1}
        v_rcp_f32 v{b+1}, v{b+1}
        """)
    a(f"""
    s_mul_i32 s27, s3, {2*112*1024}
    s_lshl_b32 s28, s26, 11
    s_add_u32 s27, s27, s28
    s_waitcnt vmcnt(0)
    """)
    for lb in range(2):
        b=24+4*lb; A=192+16*lb
        for r in range(0,16,2): a(f"v_pk_fma_f32 v[{A+r}:{A+r+1}], v[{b}:{b+1}], v[{224+r}:{225+r}], v[{A+r}:{A+r+1}] op_sel_hi:[0,1,1] neg_lo:[1,0,0] neg_hi:[1,0,0]")
        for r in range(0,16,2): a(f"v_pk_fma_f32 v[{A+r}:{A+r+1}], v[{A+r}:{A+r+1}], v[{b}:{b+1}], v[{240+r}:{241+r}] op_sel:[0,1,0] op_sel_hi:[1,1,1]")
        for r in range(16): a(f"v_max_f32 v{A+r}, 0, v{A+r}")
        for r in range(0,16,2): a(f"v_pk_mul_f32 v[{A+r}:{A+r+1}], v[{A+r}:{A+r+1}], v[{A+r}:{A+r+1}]")
        for r in range(8): a(f"v_cvt_pk_bf16_f32 v{64+8*lb+r}, v{A+2*r}, v{A+2*r+1}")
        for sp in range(2): a(f"buffer_store_dwordx4 v[{64+8*lb+4*sp}:{67+8*lb+4*sp}], v5, s[20:23], s27 offen offset:{1024*sp}")
        if lb==0: a(f"s_add_u32 s27, s27, {112*1024}")
    a.stamp(7); a("s_waitcnt vmcnt(0)") if STAMP else 0; a.stamp_end(2,8); a("s_endpgm\nK3_ST:")
    a("v_mov_b32 v12, 0x3f803f80")
    for i in range(8): a(f"v_mov_b32 v{16+i}, 0")
    def st(ks):
        S=24+8*(ks&3)
        for j in range(4):
            for lb in range(2):
                a(f"v_dot2c_f32_bf16 v{16+4*lb+2*(j&1)}, v{S+4*lb+j}, v12")
                a(f"v_dot2c_f32_bf16 v{17+4*lb+2*(j&1)}, v{S+4*lb+j}, v{S+4*lb+j}")
    loop(st, False)
    a(f"""
    v_lshlrev_b32 v12, 3, v1
    v_add_u32 v12, 0x10000, v12
    s_nop 2
    v_add_f32 v16, v16, v18
    v_add_f32 v17, v17, v19
    v_add_f32 v20, v20, v22
    v_add_f32 v21, v21, v23
    ds_write_b64 v12, v[16:17]
    ds_write_b64 v12, v[20:21] offset:512
    s_waitcnt lgkmcnt(0)
    s_barrier
    K3_END:
    s_endpgm
    """)
    return desc("k3_kernel",256)
def k4(a):
    a.begin("k4_kernel")
    a("s_cmp_ge_u32 s2, 256\n s_cbranch_scc1 K4_END"); a.stamp(0)
    a.srd(4,'ws',7340032,HID); a.srd(8,'ws',1835008,W2F); a.srd(12,'ws',49152,MODP); a.srd(20,'ws',512*X2S,X2T)
    a.srd(24,'b2',1024); a.srd(28,'out',2097152)
    wgmap(a)
    a.srd_fin()
    a(f"""
    v_mul_u32_u24 v3, {28*1024}, v2
    v_lshl_add_u32 v3, v1, 4, v3
    s_lshr_b32 s36, s18, 1
    s_and_b32 s37, s18, 1
    s_lshl_b32 s32, s3, 1
    s_add_u32 s32, s32, s36
    s_xor_b32 s33, s32, 1
    s_lshl_b32 s34, s16, 1
    s_add_u32 s34, s34, s37
    s_xor_b32 s35, s34, 1
    s_lshl_b32 s38, s3, 1
    s_add_u32 s38, s38, s16
    s_and_b32 s38, s38, {7*ROT4}
    s_mul_i32 s38, s38, 7
    s_lshr_b32 s38, s38, 1
    s_lshl_b32 s38, s38, 10
    """)
    for i in range(4): a(f"s_mul_i32 s{32+i}, s{32+i}, {112*1024}\n v_add_u32 v{28+i}, s{32+i}, v3")
    WIN=10
    def ld(ks):
        S=32+16*(ks%WIN)
        for i in range(4):
            a(f"buffer_load_dwordx4 v[{S+4*i}:{S+4*i+3}], v{28+i}, s[{4 if i<2 else 8}:{7 if i<2 else 11}], s38 offen")
        a(f"s_add_u32 s38, s38, 1024\n s_cmp_eq_u32 s38, {28*1024}\n s_cselect_b32 s38, 0, s38")
    for ks in range(WIN): ld(ks)
    a(f"""
    v_and_b32 v4, 31, v1
    v_lshrrev_b32 v5, 5, v1
    v_and_b32 v6, 1, v2
    v_lshl_add_u32 v4, v6, 5, v4
    s_lshl_b32 s36, s16, 6
    v_add_u32 v4, s36, v4
    v_lshrrev_b32 v6, 1, v2
    v_lshlrev_b32 v6, 5, v6
    v_lshl_add_u32 v6, v5, 2, v6
    s_lshl_b32 s36, s3, 6
    v_add_u32 v6, s36, v6
    v_mul_u32_u24 v7, {X2S}, v4
    v_lshl_add_u32 v7, v6, 1, v7
    v_and_b32 v8, 63, v6
    v_mul_u32_u24 v8, 144, v8
    v_and_b32 v9, 63, v4
    v_lshl_add_u32 v8, v9, 1, v8
    v_mul_u32_u24 v9, 96, v4
    v_lshlrev_b32 v10, 1, v4
    v_lshrrev_b32 v5, 3, v0
    v_and_b32 v6, 7, v0
    v_mul_u32_u24 v4, 144, v5
    v_lshl_add_u32 v4, v6, 4, v4
    v_lshlrev_b32 v5, 10, v5
    v_lshl_add_u32 v5, v6, 4, v5
    s_lshl_b32 s36, s3, 16
    s_lshl_b32 s37, s16, 7
    s_add_u32 s36, s36, s37
    s_add_u32 s37, s36, 0x8000
    v_lshlrev_b32 v11, 4, v1
    v_mul_u32_u24 v13, 12288, v2
    v_add_u32 v13, v13, v11
    v_xor_b32 v12, 1, v2
    v_mul_u32_u24 v12, 12288, v12
    v_add_u32 v12, v12, v11
    v_xor_b32 v14, 2, v2
    v_mul_u32_u24 v14, 12288, v14
    v_add_u32 v14, v14, v11
    v_xor_b32 v15, 3, v2
    v_mul_u32_u24 v15, 12288, v15
    v_add_u32 v15, v15, v11
    """)
    out=[4*WIN]; a.stamp(1)
    for ks in range(28):
        S=32+16*(ks%WIN)
        if ks==27: out[0]-=6
        a(f"s_waitcnt vmcnt({out[0]-4})"); out[0]-=4
        for lb in (1,0):
            for db in (1,0):
                q=2*lb+db; cc="0" if ks==0 else f"a[{16*q}:{16*q+15}]"
                a(f"v_mfma_f32_32x32x16_bf16 a[{16*q}:{16*q+15}], v[{S+4*lb}:{S+4*lb+3}], v[{S+8+4*db}:{S+11+4*db}], {cc}")
        if ks==0: a.stamp(2)
        if ks==13: a.stamp(3)
        if ks>=1 and ks-1+WIN<28: ld(ks-1+WIN); out[0]+=4
        if ks==17:
            for g in range(4): a(f"buffer_load_dwordx2 v[{16+2*g}:{17+2*g}], v7, s[20:23], 0 offen offset:{16*g}")
            a("buffer_load_dwordx4 v[24:27], v9, s[12:15], 0 offen offset:80\n buffer_load_ushort v3, v10, s[24:27], 0 offen"); ex=out[0]; out[0]+=6
    a.stamp(4); a("s_nop 9")
    for q in (3,2,1):
        for g in range(4): a(f"ds_write_b128 v{[0,12,14,15][q]}, a[{16*q+4*g}:{16*q+4*g+3}] offset:{4096*(q-1)+1024*g}")
    a("""
    v_add_f32 v24, v24, v25
    v_add_f32 v26, v26, v27
    v_add_f32 v24, v24, v26
    v_cvt_pk_bf16_f32 v24, v24, v24
    v_lshlrev_b32 v24, 16, v24
    v_lshlrev_b32 v28, 16, v3
    """)
    for r in range(16): a(f"v_accvgpr_read_b32 v{32+r}, a{r}")
    for i in range(8): a(f"v_lshlrev_b32 v{96+2*i}, 16, v{16+i}\n v_and_b32 v{97+2*i}, s17, v{16+i}")
    a("s_waitcnt lgkmcnt(0)\n s_barrier")
    for w in range(3):
        for g in range(4): a(f"ds_read_b128 v[{48+16*w+4*g}:{51+16*w+4*g}], v13 offset:{4096*w+1024*g}")
    for w in range(3):
        a(f"s_waitcnt lgkmcnt({8-4*w})")
        for r in range(0,16,2): a(f"v_pk_add_f32 v[{32+r}:{33+r}], v[{32+r}:{33+r}], v[{48+16*w+r}:{49+16*w+r}]")
    Y=list(range(32,48)); a.stamp(5)
    rnd(a,Y)
    for r in range(0,16,2): a(f"v_pk_add_f32 v[{32+r}:{33+r}], v[{32+r}:{33+r}], v[28:29] op_sel_hi:[1,0]")
    rnd(a,Y)
    for r in range(0,16,2): a(f"v_pk_mul_f32 v[{32+r}:{33+r}], v[{32+r}:{33+r}], v[24:25] op_sel_hi:[1,0]")
    rnd(a,Y)
    for r in range(0,16,2): a(f"v_pk_add_f32 v[{32+r}:{33+r}], v[{32+r}:{33+r}], v[{96+r}:{97+r}]")
    for i in range(8): a(f"v_cvt_pk_bf16_f32 v{48+i}, v{32+2*i}, v{33+2*i}")
    for g in range(4):
        for r in range(4):
            a(f"ds_write_b16{'_d16_hi' if r&1 else ''} v8, v{48+2*g+r//2} offset:{49152+144*(8*g+r)}")
    a("s_waitcnt lgkmcnt(0)\n s_barrier")
    a(f"ds_read_b128 v[32:35], v4 offset:49152\n ds_read_b128 v[36:39], v4 offset:{49152+32*144}")
    a("s_waitcnt lgkmcnt(1)\n buffer_store_dwordx4 v[32:35], v5, s[28:31], s36 offen\n s_waitcnt lgkmcnt(0)\n buffer_store_dwordx4 v[36:39], v5, s[28:31], s37 offen")
    a.stamp(6); a("s_waitcnt vmcnt(0)") if STAMP else 0; a.stamp_end(3,7); a("K4_END:\n s_endpgm")
    return desc("k4_kernel",192,64)
```

```python
import sys
from common import *
import k1,k2,k34
hdr=open(f'cdna_kernels/{NAME}.s.ref').read().split('\n')
hdr=[l for l in hdr if l.startswith(';') and '@launch' not in l and 'Override' not in l and 'grid=ceil' not in l]
a=Asm()
d=[k1.k1(a),k2.k2(a),k34.k3(a)]+([] if FUSE else [k34.k4(a)])
L=[f"; @launch kernel=k1_kernel grid=({k1.K1_GRID},1,1) block=(256,1,1) lds={k1.K1_LDS}",
   f"; @launch kernel=k2_kernel grid=({k2.K2_GRID},1,1) block=(256,1,1) lds={k2.K2_LDS}",
   f"; @launch kernel=k3_kernel grid=(256,1,1) block=(512,1,1) lds={k34.K3_LDS}",
   f"; @launch kernel=k4_kernel grid=(256,1,1) block=(256,1,1) lds={k34.K4_LDS}"]
if FUSE: L=L[:3]
out='\n'.join(hdr+L)+'\n.amdgcn_target "amdgcn-amd-amdhsa--gfx950"\n.text\n'+a.text()+'.section .rodata,"a"\n'+''.join(d)
import re
out=re.sub(r'(?m)^(\s*buffer_store.*)$', r'\1 sc0 sc1', out)
SC=os.environ.get('SC','none')
if SC!='none':
    i=out.index('\n'+SC)
    t=re.sub(r'(?m)^(\s*buffer_load.*?)( lds)?$', r'\1 sc0\2', out[i:]); out=out[:i]+t
open(sys.argv[1] if len(sys.argv)>1 else f'cdna_kernels/{NAME}.s','w').write(out)
```

```python
from common import *
NCV=256; NW1=112
K2_GRID=NCV+NW1+(64 if W2AT==2 else 0)
CPS=4416
H1=4*CPS
H2=H1+6912
CH=H2+5120
K2_LDS=2*CH
def rnd(a, regs, tmp=None):
    for i in range(0,len(regs),2): a(f"v_cvt_pk_bf16_f32 v{regs[i]}, v{regs[i]}, v{regs[i+1]}")
    for i in range(0,len(regs),2):
        a(f"v_and_b32 v{regs[i+1]}, s17, v{regs[i]}"); a(f"v_lshlrev_b32 v{regs[i]}, 16, v{regs[i]}")
def k2(a):
    a.begin("k2_kernel")
    a(f"""
    s_cmp_ge_u32 s2, {K2_GRID}
    s_cbranch_scc1 K2_END
    v_and_b32 v1, 63, v0
    v_lshrrev_b32 v2, 6, v0
    s_mov_b32 s17, 0xffff0000
    s_cmp_ge_u32 s2, {NCV}
    s_cbranch_scc1 K2_W
    """)
    a.stamp(0); a.srd(4,'ws',256*XTS,XT); a.srd(20,'ws',512*RVS,RV)
    a("s_load_dwordx2 s[24:25], s[0:1], 64\n s_load_dwordx2 s[12:13], s[0:1], 144"); a.srd(28,'ws',512*X2S,X2T); a.srd_fin()
    a(f"""
    s_mul_i32 s19, s2, 192
    s_add_u32 s19, s19, {MODP}
    s_add_u32 s12, s12, s19
    s_addc_u32 s13, s13, 0
    s_lshl_b32 s32, s2, 2
    s_load_dwordx8 s[40:47], s[12:13], 0
    s_load_dwordx4 s[48:51], s[12:13], 32
    s_load_dwordx8 s[52:59], s[12:13], 96
    s_load_dwordx4 s[60:63], s[12:13], 128
    s_load_dword s33, s[24:25], s32
    s_mul_i32 s3, s2, {XTS}
    v_lshlrev_b32 v4, 6, v0
    v_lshlrev_b32 v3, 5, v0
    v_lshlrev_b32 v5, 4, v0
    s_mul_i32 s16, s2, {2*RVS}
    s_add_u32 s18, s16, {RVS}
    buffer_load_dwordx4 v[8:11], v5, s[20:23], s16 offen
    buffer_load_dwordx2 v[12:13], v5, s[20:23], s16 offen offset:16
    buffer_load_dwordx4 v[16:19], v5, s[20:23], s18 offen
    buffer_load_dwordx2 v[20:21], v5, s[20:23], s18 offen offset:16
    buffer_load_dwordx4 v[104:107], v4, s[4:7], s3 offen offset:0
    buffer_load_dwordx4 v[108:111], v4, s[4:7], s3 offen offset:16
    buffer_load_dwordx4 v[112:115], v4, s[4:7], s3 offen offset:32
    buffer_load_dwordx4 v[116:119], v4, s[4:7], s3 offen offset:48
    s_mul_i32 s3, s2, {2*X2S}
    """)
    a(f"""
    v_mov_b32 v76, 0
    v_mov_b32 v77, 0
    v_mov_b32 v78, 0
    v_mov_b32 v79, 0
    v_cmp_gt_u32 vcc, 144, v0
    s_and_saveexec_b64 s[34:35], vcc
    ds_write_b128 v5, v[76:79] offset:{H1}
    ds_write_b128 v5, v[76:79] offset:{CH+H1}
    s_mov_b64 exec, s[34:35]
    v_cmp_gt_u32 vcc, 160, v0
    s_and_saveexec_b64 s[34:35], vcc
    ds_write_b128 v5, v[76:79] offset:{H2}
    ds_write_b128 v5, v[76:79] offset:{CH+H2}
    s_mov_b64 exec, s[34:35]
    v_cmp_gt_u32 vcc, 8, v0
    s_and_saveexec_b64 s[34:35], vcc
    """)
    for ch in range(2):
        for c in range(4): a(f"ds_write_b128 v5, v[76:79] offset:{ch*CH+c*CPS+4096}")
    a("s_mov_b64 exec, s[34:35]")
    a(f"""
    v_and_b32 v92, 31, v1
    v_lshrrev_b32 v93, 5, v1
    v_lshrrev_b32 v94, 1, v2
    v_mul_u32_u24 v94, {CH}, v94
    v_sub_u32 v95, 3, v92
    v_and_b32 v95, 3, v95
    v_mul_u32_u24 v96, {CPS-2}, v95
    v_add_u32 v96, v96, v94
    v_lshl_add_u32 v96, v93, 4, v96
    v_lshlrev_b32 v97, 1, v92
    v_sub_u32 v96, v96, v97
    v_add_u32 v96, {2*2047-32*126}, v96
    v_mul_u32_u24 v97, 144, v92
    v_lshl_add_u32 v97, v93, 4, v97
    v_add_u32 v97, v97, v94
    v_mul_u32_u24 v98, 80, v92
    v_lshl_add_u32 v98, v93, 4, v98
    v_add_u32 v98, v98, v94
    v_lshrrev_b32 v99, 3, v0
    v_lshl_add_u32 v99, v99, 4, v5
    v_lshrrev_b32 v100, 2, v0
    v_lshl_add_u32 v100, v100, 4, v5
    s_nop 0
    v_readfirstlane_b32 s36, v2
    """)
    a("s_waitcnt lgkmcnt(0)")
    for ch in range(2):
        for m in range(3):
            b=40+12*ch+4*m; v=48+8*m+ch
            a(f"v_mov_b32 v{v}, s{b}\n v_mov_b32 v{v+2}, s{b+2}\n v_add_f32 v{v}, s{b+1}, v{v}\n v_add_f32 v{v+2}, s{b+3}, v{v+2}\n v_add_f32 v{v}, v{v}, v{v+2}")
    rnd(a,[48,49,56,57,64,65])
    a("v_add_f32 v56, 1.0, v56\n v_add_f32 v57, 1.0, v57")
    rnd(a,[56,57])
    a("v_mov_b32 v72, s33\n v_and_b32 v73, s17, v72\n v_lshlrev_b32 v72, 16, v72")
    a.stamp(1)
    for ch in range(2):
        D=8+8*ch
        a(f"s_waitcnt vmcnt({6-2*ch})")
        a(f"ds_write_b128 v5, v[{D}:{D+3}] offset:{ch*CH}")
        for i in range(4): a(f"v_alignbit_b32 v{80+i}, v{D+i+1}, v{D+i}, 16")
        for i in range(4): a(f"v_mov_b32 v{84+i}, v{D+i+1}")
        for i in range(4): a(f"v_alignbit_b32 v{88+i}, v{D+i+2}, v{D+i+1}, 16")
        for c in range(1,4): a(f"ds_write_b128 v5, v[{76+4*c}:{79+4*c}] offset:{ch*CH+c*CPS}")
        if ch==0: a("s_nop 1")
    a.stamp(2)
    H=list(range(120,136))
    a("s_waitcnt vmcnt(0)")
    for e in range(8): a(f"v_lshlrev_b32 v{120+e}, 16, v{105+2*e}\n v_and_b32 v{128+e}, s17, v{105+2*e}")
    for ch in range(2):
        for e in range(8): a(f"v_mul_f32 v{120+8*ch+e}, v{120+8*ch+e}, v{56+ch}")
    rnd(a,H)
    for ch in range(2):
        for e in range(8): a(f"v_add_f32 v{120+8*ch+e}, v{120+8*ch+e}, v{48+ch}")
    for i in range(8): a(f"v_cvt_pk_bf16_f32 v{224+i}, v{120+2*i}, v{121+2*i}")
    fa=Asm()
    for i in range(8): fa(f"v_lshlrev_b32 v{120+2*i}, 16, v{224+i}\n v_and_b32 v{121+2*i}, s17, v{224+i}")
    for ch in range(2):
        for e in range(8): fa(f"v_mul_f32 v{120+8*ch+e}, v{120+8*ch+e}, v{72+ch}")
    rnd(fa,H)
    for e in range(8): fa(f"v_and_b32 v{105+2*e}, s17, v{104+2*e}\n v_lshlrev_b32 v{104+2*e}, 16, v{104+2*e}")
    a(f"""
    ds_write_b128 v99, v[224:227] offset:{H1+2304}
    ds_write_b128 v99, v[228:231] offset:{CH+H1+2304}
    v_cmp_gt_u32 vcc, 128, v0
    s_and_saveexec_b64 s[34:35], vcc
    ds_write_b128 v100, v[224:227] offset:{H2+2560}
    ds_write_b128 v100, v[228:231] offset:{CH+H2+2560}
    s_mov_b64 exec, s[34:35]
    s_waitcnt lgkmcnt(0)
    s_barrier
    s_bitcmp1_b32 s36, 0
    s_cbranch_scc1 K2_R1
    """)
    def offA(i): return 32*(126-i)
    def offB1(j): return H1+2304 + (-32*j) + 16*((-16*j)//64)
    def offB2(i): return H2+2560 + 2*(1024-16*i) + 16*((1024-16*i)//32)
    def phase(steps):
        LA=4; NA=8; NB=10
        bslot={}; nb=[0]; issued=[]
        cnt=[0]
        def load(n):
            kind,i=steps[n]
            A=8+4*(n%NA)
            a(f"ds_read_b64 v[{A}:{A+1}], v96 offset:{offA(i)}"); a(f"ds_read_b64 v[{A+2}:{A+3}], v96 offset:{offA(i)+8}"); cnt[0]+=2
            need=[('1',i-2),('1',i)] if kind==1 else [('2',i)]
            for key in need:
                if key not in bslot:
                    bslot[key]=184+4*(nb[0]%NB); nb[0]+=1
                    B=bslot[key]
                    if key[0]=='1': a(f"ds_read_b128 v[{B}:{B+3}], v97 offset:{offB1(key[1])}")
                    else: a(f"ds_read_b128 v[{B}:{B+3}], v98 offset:{offB2(key[1])}")
                    cnt[0]+=1
            issued.append(cnt[0])
        first={}; fill=list(fa.l)
        for n in range(min(LA,len(steps))): load(n)
        for n in range(len(steps)):
            if n+LA<len(steps): load(n+LA)
            a(f"s_waitcnt lgkmcnt({min(15,cnt[0]-issued[n])})")
            kind,i=steps[n]; A=8+4*(n%NA)
            for acc,key in ([(136,('1',i)),(152,('1',i-2))] if kind==1 else [(168,('2',i))]):
                B=bslot[key]; c=f"v[{acc}:{acc+15}]" if acc in first else "0"; first[acc]=1
                a(f"v_mfma_f32_32x32x16_bf16 v[{acc}:{acc+15}], v[{A}:{A+3}], v[{B}:{B+3}], {c}")
                if fill: a.l.append(fill.pop(0))
        assert not fill
    def ywrite(base, accs):
        for u,acc in accs:
            for g in range(4): a(f"ds_write_b128 v97, v[{acc+4*g}:{acc+4*g+3}] offset:{base+128*u+32*g}")
    yaddr=f"""
    v_mul_u32_u24 v97, 272, v92
    v_lshl_add_u32 v97, v93, 4, v97
    v_add_u32 v97, v97, v94
    v_mul_u32_u24 v98, 144, v92
    v_lshl_add_u32 v98, v93, 4, v98
    v_add_u32 v98, v98, v94
    s_nop 7
    s_barrier
    """
    a.stamp(3); phase([(1,i) for i in range(-1,47)]); a.stamp(4)
    a(yaddr); ywrite(8704,[(0,136),(1,152)])
    a("s_branch K2_EP\nK2_R1:")
    a.stamp(3); phase([(1,i) for i in range(47,64)]+[(2,i) for i in range(64,127)]); a.stamp(4)
    a(yaddr); ywrite(0,[(0,136),(1,152)])
    for g in range(4): a(f"ds_write_b128 v98, v[{168+4*g}:{171+4*g}] offset:{17408+32*g}")
    a(f"""
    K2_EP:
    v_lshrrev_b32 v99, 3, v0
    v_lshl_add_u32 v99, v99, 4, v3
    v_and_b32 v100, 127, v0
    v_lshrrev_b32 v101, 2, v100
    v_lshlrev_b32 v100, 5, v100
    v_lshl_add_u32 v100, v101, 4, v100
    s_waitcnt lgkmcnt(0)
    s_barrier
    """)
    for ch in range(2):
        for hf in range(2):
            a(f"ds_read_b128 v[{8+8*ch+4*hf}:{11+8*ch+4*hf}], v99 offset:{ch*CH+16*hf}")
            a(f"ds_read_b128 v[{24+8*ch+4*hf}:{27+8*ch+4*hf}], v99 offset:{ch*CH+8704+16*hf}")
            a(f"ds_read_b128 v[{136+8*ch+4*hf}:{139+8*ch+4*hf}], v100 offset:{ch*CH+17408+16*hf}")
    a("s_waitcnt lgkmcnt(0)\n s_cmp_lt_u32 s36, 2\n s_cbranch_scc1 K2_NOB")
    for e in range(0,16,2): a(f"v_pk_add_f32 v[{8+e}:{9+e}], v[{8+e}:{9+e}], v[{136+e}:{137+e}]")
    a("K2_NOB:"); a.stamp(5)
    Y=list(range(8,24))
    for e in range(0,16,2): a(f"v_pk_add_f32 v[{8+e}:{9+e}], v[{8+e}:{9+e}], v[{24+e}:{25+e}]")
    rnd(a,Y)
    for e in range(0,16,2): a(f"v_pk_add_f32 v[{8+e}:{9+e}], v[{8+e}:{9+e}], v[{120+e}:{121+e}]")
    rnd(a,Y)
    for e in range(0,16,2): a(f"v_pk_mul_f32 v[{8+e}:{9+e}], v[{8+e}:{9+e}], v[64:65] op_sel:[0,{e//8}] op_sel_hi:[1,{e//8}]")
    rnd(a,Y)
    for e in range(16): a(f"v_add_f32 v{8+e}, v{8+e}, v{104+2*(e&7)+e//8}")
    for i in range(8): a(f"v_cvt_pk_bf16_f32 v{24+i}, v{8+2*i}, v{9+2*i}")
    a(f"""
    s_add_u32 s16, s3, {X2S}
    buffer_store_dwordx4 v[24:27], v5, s[28:31], s3 offen
    buffer_store_dwordx4 v[28:31], v5, s[28:31], s16 offen
    """)
    a.stamp(6); a("s_waitcnt vmcnt(0)") if STAMP else 0; a.stamp_end(1,7); a("s_endpgm")
    if W2AT==2:
        a("K2_W2:"); w2relayout(a, NCV+NW1)
        a(f"K2_W:\n s_cmp_ge_u32 s2, {NCV+NW1}\n s_cbranch_scc1 K2_W2")
    else: a("K2_W:")
    wlanes(a)
    a.srd(4,'w1',1835008); a.srd(8,'ws',1835008,W1F); a.srd(12,'ws',49152,MODP); a.srd(20,'ws',28672,CSB); a.srd(24,'b1',3584); a.srd_fin()
    a(f"""
    s_sub_u32 s3, s2, {NCV}
    s_and_b32 s18, s3, 1
    s_lshr_b32 s3, s3, 1
    s_lshl_b32 s19, s18, 8
    v_lshl_add_u32 v9, v6, 9, v9
    v_lshl_add_u32 v10, v2, 6, v3
    v_add_u32 v10, s19, v10
    v_mul_u32_u24 v11, 96, v10
    v_mul_u32_u24 v10, 3584, v10
    v_lshl_add_u32 v10, v4, 4, v10
    s_lshl_b32 s16, s3, 6
    v_and_b32 v12, 31, v1
    v_lshlrev_b32 v13, 1, v12
    buffer_load_ushort v14, v13, s[24:27], s16 offen
    """)
    for ks in range(4):
        a(f"s_mov_b32 s32, {16*96*ks}")
        for m in range(2): a(f"buffer_load_dwordx4 v[{48+8*ks+4*m}:{51+8*ks+4*m}], v11, s[12:15], s32 offen offset:{48+16*m}")
    for ks in range(4):
        a(f"buffer_load_dwordx4 v[{16+4*ks}:{19+4*ks}], v10, s[4:7], s16 offen")
        if ks<3: a(f"s_add_u32 s16, s16, {16*3584}")
    for e in range(8): a(f"v_mov_b32 v{112+e}, 0")
    a("v_mov_b32 v120, 0\n v_mov_b32 v121, 0x3f803f80\n s_waitcnt vmcnt(4)")
    for i in range(8):
        b=48+4*i
        a(f"v_add_f32 v{b}, v{b}, v{b+1}\n v_add_f32 v{b+2}, v{b+2}, v{b+3}\n v_add_f32 v{b}, v{b}, v{b+2}")
    rnd(a,[48+4*i for i in range(8)])
    for ks in range(4): a(f"v_add_f32 v{52+8*ks}, 1.0, v{52+8*ks}")
    rnd(a,[52+8*ks for ks in range(4)])
    for ks in range(4):
        sb=48+8*ks; cb=52+8*ks
        a(f"s_waitcnt vmcnt({3-ks})")
        for j in range(4): a(f"v_lshlrev_b32 v{128+2*j}, 16, v{16+4*ks+j}\n v_and_b32 v{129+2*j}, s17, v{16+4*ks+j}")
        for j in range(4): a(f"v_pk_fma_f32 v[{112+2*j}:{113+2*j}], v[{128+2*j}:{129+2*j}], v[{sb}:{sb+1}], v[{112+2*j}:{113+2*j}] op_sel_hi:[1,0,1]")
        for j in range(4): a(f"v_pk_mul_f32 v[{128+2*j}:{129+2*j}], v[{128+2*j}:{129+2*j}], v[{cb}:{cb+1}] op_sel_hi:[1,0]")
        for j in range(4): a(f"v_cvt_pk_bf16_f32 v{16+4*ks+j}, v{128+2*j}, v{129+2*j}")
        a(f"ds_write_b128 v5, v[{16+4*ks}:{19+4*ks}] offset:{1024*ks}")
    a("v_mul_u32_u24 v10, 48, v0")
    for i in range(2): a(f"ds_write_b128 v10, v[{112+4*i}:{115+4*i}] offset:{32768+16*i}")
    a("s_waitcnt lgkmcnt(0)")
    for ks in range(4):
        a(f"ds_read_b64_tr_b16 v[{16+4*ks}:{17+4*ks}], v9 offset:{1024*ks}")
        a(f"ds_read_b64_tr_b16 v[{18+4*ks}:{19+4*ks}], v9 offset:{1024*ks+256}")
    a("s_lshl_b32 s16, s3, 15\n s_lshl_b32 s19, s18, 14\n s_add_u32 s16, s16, s19\n v_lshlrev_b32 v10, 4, v1\n v_lshl_add_u32 v10, v2, 12, v10")
    for ks in range(4):
        a(f"s_waitcnt lgkmcnt({6-2*ks})")
        a(f"buffer_store_dwordx4 v[{16+4*ks}:{19+4*ks}], v10, s[8:11], s16 offen offset:{1024*ks}")
        for j in range(4): a(f"v_dot2c_f32_bf16 v120, v{16+4*ks+j}, v121")
    a(f"""
    v_lshlrev_b32 v10, 2, v0
    v_bfe_u32 v11, v1, 3, 2
    v_mul_u32_u24 v11, 48, v11
    ds_write_b32 v10, v120 offset:49152
    v_and_b32 v15, 7, v1
    v_lshl_add_u32 v11, v15, 2, v11
    v_lshrrev_b32 v15, 5, v0
    v_mul_u32_u24 v15, 1536, v15
    v_add_u32 v11, v11, v15
    s_barrier
    """)
    for i in range(8): a(f"ds_read_b32 v{48+i}, v11 offset:{32768+192*i}")
    a("s_waitcnt lgkmcnt(0)")
    for i in range(1,8): a(f"v_add_f32 v48, v48, v{48+i}")
    a(f"""
    ds_write_b32 v10, v48 offset:50176
    v_lshrrev_b32 v11, 5, v1
    v_lshlrev_b32 v10, 10, v11
    v_lshl_add_u32 v10, v12, 2, v10
    s_waitcnt lgkmcnt(0)
    s_barrier
    """)
    for i in range(8): a(f"ds_read_b32 v{48+i}, v10 offset:{49152+128*i}")
    a(f"""
    v_lshlrev_b32 v13, 4, v12
    v_lshl_add_u32 v13, v11, 3, v13
    s_xor_b32 s19, s18, 1
    v_mul_u32_u24 v11, s19, v11
    v_cvt_f32_u32 v11, v11
    s_lshl_b32 s16, s3, 9
    s_lshl_b32 s19, s18, 2
    s_add_u32 s16, s16, s19
    v_lshlrev_b32 v14, 16, v14
    s_waitcnt lgkmcnt(0)
    """)
    for i in range(1,8): a(f"v_add_f32 v48, v48, v{48+i}")
    a("""
    v_fmac_f32 v48, v11, v14
    v_cmp_gt_u32 vcc, 64, v0
    s_and_saveexec_b64 s[34:35], vcc
    s_cbranch_execz K2_END
    buffer_store_dword v48, v13, s[20:23], s16 offen
    K2_END:
    s_endpgm
    """)
    return desc("k2_kernel",232)
def wlanes(a):
    a("""
    v_lshrrev_b32 v3, 2, v1
    v_and_b32 v4, 3, v1
    v_lshlrev_b32 v5, 4, v1
    v_lshl_add_u32 v5, v2, 13, v5
    v_lshrrev_b32 v6, 4, v1
    v_and_b32 v7, 1, v6
    v_lshrrev_b32 v6, 1, v6
    v_bfe_u32 v8, v1, 2, 2
    v_lshlrev_b32 v9, 3, v4
    v_lshl_add_u32 v9, v7, 5, v9
    v_lshl_add_u32 v9, v8, 6, v9
    v_lshl_add_u32 v9, v2, 13, v9
    """)
def w2relayout(a, base):
    wlanes(a)
    a.srd(4,'w2',1835008); a.srd(8,'ws',W2SZ+16384,W2F); a.srd_fin()
    a(f"""
    s_sub_u32 s3, s2, {base}
    s_and_b32 s18, s3, 15
    s_lshr_b32 s19, s3, 4
    v_lshl_add_u32 v9, v6, 8, v9
    v_mul_u32_u24 v10, 112, v2
    v_add_u32 v10, v10, v3
    v_lshlrev_b32 v10, 10, v10
    v_lshl_add_u32 v10, v4, 4, v10
    s_mul_i32 s16, s19, {28*16*1024}
    s_lshl_b32 s20, s18, 6
    s_add_u32 s16, s16, s20
    """)
    for ks in range(7):
        a(f"buffer_load_dwordx4 v[{16+4*ks}:{19+4*ks}], v10, s[4:7], s16 offen")
        if ks<6: a(f"s_add_u32 s16, s16, {16*1024}")
    for ks in range(7):
        a(f"s_waitcnt vmcnt({6-ks})")
        a(f"ds_write_b128 v5, v[{16+4*ks}:{19+4*ks}] offset:{1024*ks}")
    a(f"""
    v_mul_u32_u24 v10, 7168, v2
    v_lshl_add_u32 v10, v1, 4, v10
    s_mul_i32 s16, s18, {112*1024}
    s_mul_i32 s20, s19, {28*1024}
    s_add_u32 s16, s16, s20
    s_waitcnt lgkmcnt(0)
    """)
    for ks in range(7):
        a(f"ds_read_b64_tr_b16 v[{16+4*ks}:{17+4*ks}], v9 offset:{1024*ks}")
        a(f"ds_read_b64_tr_b16 v[{18+4*ks}:{19+4*ks}], v9 offset:{1024*ks+512}")
    for ks in range(7):
        a(f"s_waitcnt lgkmcnt({12-2*ks})")
        a(f"buffer_store_dwordx4 v[{16+4*ks}:{19+4*ks}], v10, s[8:11], s16 offen offset:{1024*(ks&3)}")
        if ks==3: a("s_add_u32 s16, s16, 4096")
    a(f"s_lshl_b32 s20, s3, 8\n s_add_u32 s20, s20, {W2SZ}\n v_mov_b32 v11, 0\n v_lshlrev_b32 v12, 2, v1\n buffer_store_dword v11, v12, s[8:11], s20 offen")
    a("s_endpgm")
```

```python
from common import *
from k2 import rnd
K3_LDS=65536+1024+2048
K4_LDS=49152+64*144
def wgmap(a):
    a("""
    s_and_b32 s3, s2, 7
    s_lshl_b32 s3, s3, 2
    s_bfe_u32 s16, s2, 0x20003
    s_or_b32 s3, s3, s16
    s_lshr_b32 s16, s2, 5
    v_and_b32 v1, 63, v0
    v_lshrrev_b32 v2, 6, v0
    s_mov_b32 s17, 0xffff0000
    v_readfirstlane_b32 s18, v2
    """)
def k3(a):
    a.begin("k3_kernel")
    a("s_cmp_ge_u32 s2, 256\n s_cbranch_scc1 K3_END"); a.stamp(0)
    a.srd(4,'ws',512*X2S,X2T); a.srd(8,'ws',1835008,W1F); a.srd(12,'ws',28672,CSB); a.srd(20,'ws',7340032,HID)
    if FUSE: a.srd(40,'ws',W2SZ+16384,W2F); a.srd(44,'ws',49152,MODP); a.srd(48,'b2',1024); a.srd(52,'out',2097152)
    wgmap(a)
    a("s_bfe_u32 s3, s2, 0x20001\n s_lshl_b32 s3, s3, 3\n s_bfe_u32 s16, s2, 0x30003\n s_or_b32 s3, s3, s16\n s_and_b32 s16, s2, 1\n s_lshl_b32 s16, s16, 2\n s_lshr_b32 s19, s2, 6\n s_or_b32 s16, s16, s19")
    a.srd_fin()
    a(f"""
    v_lshrrev_b32 v3, 3, v1
    v_and_b32 v4, 7, v1
    v_lshlrev_b32 v5, 1, v3
    v_and_b32 v5, 4, v5
    v_xor_b32 v4, v4, v5
    v_lshlrev_b32 v4, 4, v4
    v_mul_u32_u24 v3, {X2S}, v3
    v_add_u32 v4, v3, v4
    s_lshl_b32 s19, s3, 7
    s_mul_i32 s24, s18, {8*X2S}
    s_add_u32 s19, s19, s24
    s_lshl_b32 s25, s18, 10
    s_lshl_b32 s29, s16, 1
    s_add_u32 s29, s29, s3
    s_and_b32 s29, s29, {7*ROT3}
    v_lshlrev_b32 v5, 4, v1
    s_mul_i32 s26, s16, 7
    s_add_u32 s26, s26, s18
    s_lshl_b32 s27, s26, 15
    v_lshrrev_b32 v6, 4, v1
    v_and_b32 v7, 1, v6
    v_lshrrev_b32 v6, 1, v6
    v_bfe_u32 v8, v1, 2, 2
    v_and_b32 v9, 3, v1
    v_lshlrev_b32 v9, 3, v9
    v_lshl_add_u32 v9, v7, 5, v9
    v_lshl_add_u32 v9, v8, 7, v9
    v_lshl_add_u32 v9, v6, 10, v9
    v_lshrrev_b32 v8, 1, v8
    v_lshl_add_u32 v10, v8, 6, v9
    v_xor_b32 v11, 64, v10
    s_cmp_eq_u32 s18, 7
    s_cbranch_scc1 K3_ST
    """)
    PF=3
    def issue(c, w):
        a(f"s_add_u32 m0, s25, {c*8192}\n s_mul_i32 s28, s29, {64*X2S}\n s_add_u32 s28, s28, s19")
        a("buffer_load_dwordx4 v4, s[4:7], s28 offen lds")
        if w:
            a("s_lshl_b32 s28, s29, 12\n s_add_u32 s28, s28, s27")
            for k in range(4):
                R=64+16*(c&3)+4*k
                a(f"buffer_load_dwordx4 v[{R}:{R+3}], v5, s[8:11], s28 offen offset:{1024*k}")
        a("s_add_u32 s29, s29, 1\n s_and_b32 s29, s29, 7")
    def xload(ks):
        S=24+8*(ks&3)
        for lb in range(2):
            for rd in range(2): a(f"ds_read_b64_tr_b16 v[{S+4*lb+2*rd}:{S+4*lb+2*rd+1}], v{10+lb} offset:{2048*ks+512*rd}")
    def loop(body, w):
        n=5 if w else 1
        for c in range(PF): issue(c,w)
        a.stamp(1)
        for c in range(8):
            later=min(PF-1,7-c)*n
            a(f"s_waitcnt vmcnt({later+n-1})\n s_barrier")
            if c&1==0: a.stamp(2+c//2)
            for k in range(4): xload(4*c+k)
            if w: a(f"s_waitcnt vmcnt({later})")
            for k in range(4):
                a(f"s_waitcnt lgkmcnt({4*(3-k)})")
                body(4*c+k)
            if c+PF<8: issue(c+PF,w)
    def mm(ks):
        S=24+8*(ks&3); R=64+4*(ks&15)
        for lb in range(2):
            cc="0" if ks==0 else f"v[{192+16*lb}:{207+16*lb}]"
            a(f"v_mfma_f32_32x32x16_bf16 v[{192+16*lb}:{207+16*lb}], v[{R}:{R+3}], v[{S+4*lb}:{S+4*lb+3}], {cc}")
    a("v_and_b32 v12, 31, v1\n v_lshlrev_b32 v13, 4, v12\n s_lshl_b32 s28, s26, 9\n buffer_load_dwordx4 v[16:19], v13, s[12:15], s28 offen")
    loop(mm, True); a.stamp(6)
    a("""
    v_add_f32 v16, v16, v17
    v_add_f32 v17, v18, v19
    s_lshl_b32 s28, s18, 8
    s_add_u32 s28, s28, 0x10400
    v_lshl_add_u32 v13, v12, 2, s28
    ds_write2_b32 v13, v16, v17 offset1:32
    v_lshl_add_u32 v13, v6, 4, s28
    s_waitcnt lgkmcnt(0)
    """)
    for g in range(4): a(f"ds_read_b128 v[{224+4*g}:{227+4*g}], v13 offset:{32*g}\n ds_read_b128 v[{240+4*g}:{243+4*g}], v13 offset:{128+32*g}")
    a(f"""
    v_and_b32 v12, 31, v1
    v_lshlrev_b32 v12, 3, v12
    v_add_u32 v12, 0x10000, v12
    s_barrier
    """)
    for lb in range(2):
        for hf in range(2): a(f"ds_read_b64 v[{24+4*lb+2*hf}:{25+4*lb+2*hf}], v12 offset:{512*lb+256*hf}")
    a("s_waitcnt lgkmcnt(0)")
    for lb in range(2):
        b=24+4*lb
        a(f"""
        v_add_f32 v{b}, v{b}, v{b+2}
        v_add_f32 v{b+1}, v{b+1}, v{b+3}
        v_mul_f32 v{b}, 0x3b000000, v{b}
        v_mul_f32 v{b+1}, 0x3b000000, v{b+1}
        v_fma_f32 v{b+1}, -v{b}, v{b}, v{b+1}
        v_max_f32 v{b+1}, 0, v{b+1}
        v_cvt_pk_bf16_f32 v{b}, v{b}, v{b+1}
        v_and_b32 v{b+1}, s17, v{b}
        v_lshlrev_b32 v{b}, 16, v{b}
        v_add_f32 v{b+1}, 0x3727c5ac, v{b+1}
        v_cvt_pk_bf16_f32 v{b+1}, v{b+1}, v{b+1}
        v_lshlrev_b32 v{b+1}, 16, v{b+1}
        v_sqrt_f32 v{b+1}, v{b+1}
        s_nop 0
        v_cvt_pk_bf16_f32 v{b+1}, v{b+1}, v{b+1}
        v_lshlrev_b32 v{b+1}, 16, v{b+1}
        v_rcp_f32 v{b+1}, v{b+1}
        """)
    a(f"""
    s_mul_i32 s27, s3, {2*112*1024}
    s_lshl_b32 s28, s26, 11
    s_add_u32 s27, s27, s28
    s_waitcnt vmcnt(0)
    """)
    for lb in range(2):
        b=24+4*lb; A=192+16*lb
        for r in range(0,16,2): a(f"v_pk_fma_f32 v[{A+r}:{A+r+1}], v[{b}:{b+1}], v[{224+r}:{225+r}], v[{A+r}:{A+r+1}] op_sel_hi:[0,1,1] neg_lo:[1,0,0] neg_hi:[1,0,0]")
        for r in range(0,16,2): a(f"v_pk_fma_f32 v[{A+r}:{A+r+1}], v[{A+r}:{A+r+1}], v[{b}:{b+1}], v[{240+r}:{241+r}] op_sel:[0,1,0] op_sel_hi:[1,1,1]")
        for r in range(16): a(f"v_max_f32 v{A+r}, 0, v{A+r}")
        for r in range(0,16,2): a(f"v_pk_mul_f32 v[{A+r}:{A+r+1}], v[{A+r}:{A+r+1}], v[{A+r}:{A+r+1}]")
        for r in range(8): a(f"v_cvt_pk_bf16_f32 v{64+8*lb+r}, v{A+2*r}, v{A+2*r+1}")
        for sp in range(2): a(f"buffer_store_dwordx4 v[{64+8*lb+4*sp}:{67+8*lb+4*sp}], v5, s[20:23], s27 offen offset:{1024*sp}")
        if lb==0: a(f"s_add_u32 s27, s27, {112*1024}")
    a.stamp(7)
    if FUSE:
        a(f"""
        s_lshl_b32 s28, s3, 8
        s_add_u32 s28, s28, {W2SZ}
        v_mov_b32 v12, 1
        s_cmp_ge_u32 s18, 4
        s_cbranch_scc0 K3_F4
        s_mov_b64 exec, 1
        s_waitcnt vmcnt(0)
        buffer_atomic_add v12, off, s[40:43], s28 sc1
        s_endpgm
        K3_F4:
        """)
        k4(a); a("K3_ST:")
    else:
        a("s_waitcnt vmcnt(0)") if STAMP else 0; a.stamp_end(2,8); a("s_endpgm\nK3_ST:")
    a("v_mov_b32 v12, 0x3f803f80")
    for i in range(8): a(f"v_mov_b32 v{16+i}, 0")
    def st(ks):
        S=24+8*(ks&3)
        for j in range(4):
            for lb in range(2):
                a(f"v_dot2c_f32_bf16 v{16+4*lb+2*(j&1)}, v{S+4*lb+j}, v12")
                a(f"v_dot2c_f32_bf16 v{17+4*lb+2*(j&1)}, v{S+4*lb+j}, v{S+4*lb+j}")
    loop(st, False)
    a(f"""
    v_lshlrev_b32 v12, 3, v1
    v_add_u32 v12, 0x10000, v12
    s_nop 2
    v_add_f32 v16, v16, v18
    v_add_f32 v17, v17, v19
    v_add_f32 v20, v20, v22
    v_add_f32 v21, v21, v23
    ds_write_b64 v12, v[16:17]
    ds_write_b64 v12, v[20:21] offset:512
    s_waitcnt lgkmcnt(0)
    s_barrier
    K3_END:
    s_endpgm
    """)
    return desc("k3_kernel",256)
def k4(a):
    if not FUSE:
        a.begin("k4_kernel")
        a("s_cmp_ge_u32 s2, 256\n s_cbranch_scc1 K4_END"); a.stamp(0)
        a.srd(20,'ws',7340032,HID); a.srd(40,'ws',1835008,W2F); a.srd(44,'ws',49152,MODP); a.srd(4,'ws',512*X2S,X2T)
        a.srd(48,'b2',1024); a.srd(52,'out',2097152)
    wgmap(a)
    a.srd_fin()
    a(f"""
    v_mul_u32_u24 v3, {28*1024}, v2
    v_lshl_add_u32 v3, v1, 4, v3
    s_lshr_b32 s36, s18, 1
    s_and_b32 s37, s18, 1
    s_lshl_b32 s32, s3, 1
    s_add_u32 s32, s32, s36
    s_xor_b32 s33, s32, 1
    s_lshl_b32 s34, s16, 1
    s_add_u32 s34, s34, s37
    s_xor_b32 s35, s34, 1
    s_lshl_b32 s38, s3, 1
    s_add_u32 s38, s38, s16
    s_and_b32 s38, s38, {7*ROT4}
    s_mul_i32 s38, s38, 7
    s_lshr_b32 s38, s38, 1
    s_lshl_b32 s38, s38, 10
    """)
    for i in range(4): a(f"s_mul_i32 s{32+i}, s{32+i}, {112*1024}\n v_add_u32 v{28+i}, s{32+i}, v3")
    WIN=10
    Q=[]
    def ld(ks, which=range(4)):
        S=32+16*(ks%WIN)
        for i in which:
            a(f"buffer_load_dwordx4 v[{S+4*i}:{S+4*i+3}], v{28+i}, s[{20 if i<2 else 40}:{23 if i<2 else 43}], s38 offen"); Q.append(ks)
        a("s_add_u32 s38, s38, 1024")
    if FUSE:
        a("s_mov_b64 exec, 1\n s_waitcnt vmcnt(0)\n buffer_atomic_add v12, off, s[40:43], s28 sc1\n s_mov_b64 exec, -1")
        for ks in range(WIN): ld(ks,(2,3))
        Q.clear()
        a(f"""
        s_lshl_b32 s28, s3, 8
        s_add_u32 s28, s28, {W2SZ}
        s_mov_b32 s38, 0
        s_mov_b32 s39, 0
        s_cmp_lg_u32 s18, 0
        s_cbranch_scc1 K34_GO
        K34_SPIN:
        buffer_load_dword v4, off, s[40:43], s28 sc0 sc1
        s_add_u32 s39, s39, 1
        s_waitcnt vmcnt(0)
        v_readfirstlane_b32 s29, v4
        s_cmp_ge_u32 s39, 20000
        s_cbranch_scc1 K34_GO
        s_cmp_lt_u32 s29, 56
        s_cbranch_scc1 K34_SPIN
        K34_GO:
        s_waitcnt vmcnt(0)
        s_barrier
        """); a.stamp(8)
        for ks in range(WIN): ld(ks,(0,1))
    else:
        for ks in range(WIN): ld(ks)
    a(f"""
    v_and_b32 v4, 31, v1
    v_lshrrev_b32 v5, 5, v1
    v_and_b32 v6, 1, v2
    v_lshl_add_u32 v4, v6, 5, v4
    s_lshl_b32 s36, s16, 6
    v_add_u32 v4, s36, v4
    v_lshrrev_b32 v6, 1, v2
    v_lshlrev_b32 v6, 5, v6
    v_lshl_add_u32 v6, v5, 2, v6
    s_lshl_b32 s36, s3, 6
    v_add_u32 v6, s36, v6
    v_mul_u32_u24 v7, {X2S}, v4
    v_lshl_add_u32 v7, v6, 1, v7
    v_and_b32 v8, 63, v6
    v_mul_u32_u24 v8, 144, v8
    v_and_b32 v9, 63, v4
    v_lshl_add_u32 v8, v9, 1, v8
    v_mul_u32_u24 v9, 96, v4
    v_lshlrev_b32 v10, 1, v4
    v_lshrrev_b32 v5, 3, v0
    v_and_b32 v6, 7, v0
    v_mul_u32_u24 v4, 144, v5
    v_lshl_add_u32 v4, v6, 4, v4
    v_lshlrev_b32 v5, 10, v5
    v_lshl_add_u32 v5, v6, 4, v5
    s_lshl_b32 s36, s3, 16
    s_lshl_b32 s37, s16, 7
    s_add_u32 s36, s36, s37
    s_add_u32 s37, s36, 0x8000
    v_lshlrev_b32 v11, 4, v1
    v_mul_u32_u24 v13, 12288, v2
    v_add_u32 v13, v13, v11
    v_xor_b32 v12, 1, v2
    v_mul_u32_u24 v12, 12288, v12
    v_add_u32 v12, v12, v11
    v_xor_b32 v14, 2, v2
    v_mul_u32_u24 v14, 12288, v14
    v_add_u32 v14, v14, v11
    v_xor_b32 v15, 3, v2
    v_mul_u32_u24 v15, 12288, v15
    v_add_u32 v15, v15, v11
    """)
    out=[4*WIN]; a.stamp(1) if not FUSE else 0
    for ks in range(28):
        S=32+16*(ks%WIN)
        if ks==27: Q.clear()
        while ks in Q: Q.pop(0)
        a(f"s_waitcnt vmcnt({len(Q)})")
        for lb in (1,0):
            for db in (1,0):
                q=2*lb+db; cc="0" if ks==0 else f"v[{192+16*q}:{207+16*q}]"
                a(f"v_mfma_f32_32x32x16_bf16 v[{192+16*q}:{207+16*q}], v[{S+4*lb}:{S+4*lb+3}], v[{S+8+4*db}:{S+11+4*db}], {cc}")
        if ks==0: a.stamp(2) if not FUSE else 0
        if ks==13: a.stamp(3) if not FUSE else 0
        if ks>=1 and ks-1+WIN<28: ld(ks-1+WIN)
        if ks==17:
            for g in range(4): a(f"buffer_load_dwordx2 v[{16+2*g}:{17+2*g}], v7, s[4:7], 0 offen offset:{16*g}")
            a("buffer_load_dwordx4 v[24:27], v9, s[44:47], 0 offen offset:80\n buffer_load_ushort v3, v10, s[48:51], 0 offen"); Q.extend([99]*6)
    a.stamp(4) if not FUSE else 0; a("s_nop 9")
    for q in (3,2,1):
        for g in range(4): a(f"ds_write_b128 v{[0,12,14,15][q]}, v[{192+16*q+4*g}:{195+16*q+4*g}] offset:{4096*(q-1)+1024*g}")
    a("""
    v_add_f32 v24, v24, v25
    v_add_f32 v26, v26, v27
    v_add_f32 v24, v24, v26
    v_cvt_pk_bf16_f32 v24, v24, v24
    v_lshlrev_b32 v24, 16, v24
    v_lshlrev_b32 v28, 16, v3
    """)
    for r in range(16): a(f"v_mov_b32 v{32+r}, v{192+r}")
    for i in range(8): a(f"v_lshlrev_b32 v{96+2*i}, 16, v{16+i}\n v_and_b32 v{97+2*i}, s17, v{16+i}")
    a("s_waitcnt lgkmcnt(0)\n s_barrier")
    for w in range(3):
        for g in range(4): a(f"ds_read_b128 v[{48+16*w+4*g}:{51+16*w+4*g}], v13 offset:{4096*w+1024*g}")
    for w in range(3):
        a(f"s_waitcnt lgkmcnt({8-4*w})")
        for r in range(0,16,2): a(f"v_pk_add_f32 v[{32+r}:{33+r}], v[{32+r}:{33+r}], v[{48+16*w+r}:{49+16*w+r}]")
    Y=list(range(32,48)); a.stamp(5) if not FUSE else 0
    rnd(a,Y)
    for r in range(0,16,2): a(f"v_pk_add_f32 v[{32+r}:{33+r}], v[{32+r}:{33+r}], v[28:29] op_sel_hi:[1,0]")
    rnd(a,Y)
    for r in range(0,16,2): a(f"v_pk_mul_f32 v[{32+r}:{33+r}], v[{32+r}:{33+r}], v[24:25] op_sel_hi:[1,0]")
    rnd(a,Y)
    for r in range(0,16,2): a(f"v_pk_add_f32 v[{32+r}:{33+r}], v[{32+r}:{33+r}], v[{96+r}:{97+r}]")
    for i in range(8): a(f"v_cvt_pk_bf16_f32 v{48+i}, v{32+2*i}, v{33+2*i}")
    for g in range(4):
        for r in range(4):
            a(f"ds_write_b16{'_d16_hi' if r&1 else ''} v8, v{48+2*g+r//2} offset:{49152+144*(8*g+r)}")
    a("s_waitcnt lgkmcnt(0)\n s_barrier")
    a(f"ds_read_b128 v[32:35], v4 offset:49152\n ds_read_b128 v[36:39], v4 offset:{49152+32*144}")
    a("s_waitcnt lgkmcnt(1)\n buffer_store_dwordx4 v[32:35], v5, s[52:55], s36 offen\n s_waitcnt lgkmcnt(0)\n buffer_store_dwordx4 v[36:39], v5, s[52:55], s37 offen")
    a.stamp(6) if not FUSE else 0; a("s_waitcnt vmcnt(0)") if STAMP else 0; a.stamp_end(2,9) if FUSE else a.stamp_end(3,7); a("K4_END:\n s_endpgm")
    return desc("k4_kernel",256)
```

```python
from common import *
from k2 import rnd
K3_LDS=65536+1024+2048
K4_LDS=49152+64*144
def wgmap(a):
    a("""
    s_and_b32 s3, s2, 7
    s_lshl_b32 s3, s3, 2
    s_bfe_u32 s16, s2, 0x20003
    s_or_b32 s3, s3, s16
    s_lshr_b32 s16, s2, 5
    v_and_b32 v1, 63, v0
    v_lshrrev_b32 v2, 6, v0
    s_mov_b32 s17, 0xffff0000
    v_readfirstlane_b32 s18, v2
    """)
def k3(a):
    a.begin("k3_kernel")
    a("s_cmp_ge_u32 s2, 256\n s_cbranch_scc1 K3_END"); a.stamp(0)
    a.srd(4,'ws',512*X2S,X2T); a.srd(8,'ws',1835008,W1F); a.srd(12,'ws',28672,CSB); a.srd(20,'ws',7340032,HID)
    if FUSE: a.srd(40,'ws',W2SZ+16384,W2F); a.srd(44,'ws',49152,MODP); a.srd(48,'b2',1024); a.srd(52,'out',2097152)
    wgmap(a)
    a("s_bfe_u32 s3, s2, 0x20001\n s_lshl_b32 s3, s3, 3\n s_bfe_u32 s16, s2, 0x30003\n s_or_b32 s3, s3, s16\n s_and_b32 s16, s2, 1\n s_lshl_b32 s16, s16, 2\n s_lshr_b32 s19, s2, 6\n s_or_b32 s16, s16, s19")
    a.srd_fin()
    a(f"""
    v_lshrrev_b32 v3, 3, v1
    v_and_b32 v4, 7, v1
    v_lshlrev_b32 v5, 1, v3
    v_and_b32 v5, 4, v5
    v_xor_b32 v4, v4, v5
    v_lshlrev_b32 v4, 4, v4
    v_mul_u32_u24 v3, {X2S}, v3
    v_add_u32 v4, v3, v4
    s_lshl_b32 s19, s3, 7
    s_mul_i32 s24, s18, {8*X2S}
    s_add_u32 s19, s19, s24
    s_lshl_b32 s25, s18, 10
    s_lshl_b32 s29, s16, 1
    s_add_u32 s29, s29, s3
    s_and_b32 s29, s29, {7*ROT3}
    v_lshlrev_b32 v5, 4, v1
    s_mul_i32 s26, s16, 7
    s_add_u32 s26, s26, s18
    s_lshl_b32 s27, s26, 15
    v_lshrrev_b32 v6, 4, v1
    v_and_b32 v7, 1, v6
    v_lshrrev_b32 v6, 1, v6
    v_bfe_u32 v8, v1, 2, 2
    v_and_b32 v9, 3, v1
    v_lshlrev_b32 v9, 3, v9
    v_lshl_add_u32 v9, v7, 5, v9
    v_lshl_add_u32 v9, v8, 7, v9
    v_lshl_add_u32 v9, v6, 10, v9
    v_lshrrev_b32 v8, 1, v8
    v_lshl_add_u32 v10, v8, 6, v9
    v_xor_b32 v11, 64, v10
    s_cmp_eq_u32 s18, 7
    s_cbranch_scc1 K3_ST
    """)
    PF=3
    def issue(c, w):
        a(f"s_add_u32 m0, s25, {c*8192}\n s_mul_i32 s28, s29, {64*X2S}\n s_add_u32 s28, s28, s19")
        a("buffer_load_dwordx4 v4, s[4:7], s28 offen lds")
        if w:
            a("s_lshl_b32 s28, s29, 12\n s_add_u32 s28, s28, s27")
            for k in range(4):
                R=64+16*(c&3)+4*k
                a(f"buffer_load_dwordx4 v[{R}:{R+3}], v5, s[8:11], s28 offen offset:{1024*k}")
        a("s_add_u32 s29, s29, 1\n s_and_b32 s29, s29, 7")
    def xload(ks):
        S=24+8*(ks&3)
        for lb in range(2):
            for rd in range(2): a(f"ds_read_b64_tr_b16 v[{S+4*lb+2*rd}:{S+4*lb+2*rd+1}], v{10+lb} offset:{2048*ks+512*rd}")
    def loop(body, w):
        n=5 if w else 1
        for c in range(PF): issue(c,w)
        a.stamp(1)
        for c in range(8):
            later=min(PF-1,7-c)*n
            a(f"s_waitcnt vmcnt({later+n-1})\n s_barrier")
            if c&1==0: a.stamp(2+c//2)
            for k in range(4): xload(4*c+k)
            if w: a(f"s_waitcnt vmcnt({later})")
            for k in range(4):
                a(f"s_waitcnt lgkmcnt({4*(3-k)})")
                body(4*c+k)
            if c+PF<8: issue(c+PF,w)
    def mm(ks):
        S=24+8*(ks&3); R=64+4*(ks&15)
        for lb in range(2):
            cc="0" if ks==0 else f"v[{192+16*lb}:{207+16*lb}]"
            a(f"v_mfma_f32_32x32x16_bf16 v[{192+16*lb}:{207+16*lb}], v[{R}:{R+3}], v[{S+4*lb}:{S+4*lb+3}], {cc}")
    a("v_and_b32 v12, 31, v1\n v_lshlrev_b32 v13, 4, v12\n s_lshl_b32 s28, s26, 9\n buffer_load_dwordx4 v[16:19], v13, s[12:15], s28 offen")
    loop(mm, True); a.stamp(6)
    a(f"""
    s_mul_i32 s27, s3, {2*112*1024}
    s_lshl_b32 s28, s26, 11
    s_add_u32 s27, s27, s28
    """)
    if FUSE:
        a(f"""
        s_lshl_b32 s30, s3, 9
        s_lshl_b32 s29, s16, 6
        s_add_u32 s30, s30, s29
        s_add_u32 s30, s30, {W2SZ}
        s_cmp_ge_u32 s18, 4
        s_cbranch_scc1 K3_NOPRE
        """)
        g4=k4g(a); next(g4); a("K3_NOPRE:")
    a("""
    v_add_f32 v16, v16, v17
    v_add_f32 v17, v18, v19
    s_lshl_b32 s28, s18, 8
    s_add_u32 s28, s28, 0x10400
    v_lshl_add_u32 v13, v12, 2, s28
    ds_write2_b32 v13, v16, v17 offset1:32
    v_lshl_add_u32 v13, v6, 4, s28
    s_waitcnt lgkmcnt(0)
    """)
    for g in range(4): a(f"ds_read_b128 v[{224+4*g}:{227+4*g}], v13 offset:{32*g}\n ds_read_b128 v[{240+4*g}:{243+4*g}], v13 offset:{128+32*g}")
    a(f"""
    v_and_b32 v12, 31, v1
    v_lshlrev_b32 v12, 3, v12
    v_add_u32 v12, 0x10000, v12
    s_barrier
    """)
    for lb in range(2):
        for hf in range(2): a(f"ds_read_b64 v[{32+4*lb+2*hf}:{33+4*lb+2*hf}], v12 offset:{512*lb+256*hf}")
    a("s_waitcnt lgkmcnt(0)")
    for lb in range(2):
        b=32+4*lb
        a(f"""
        v_add_f32 v{b}, v{b}, v{b+2}
        v_add_f32 v{b+1}, v{b+1}, v{b+3}
        v_mul_f32 v{b}, 0x3b000000, v{b}
        v_mul_f32 v{b+1}, 0x3b000000, v{b+1}
        v_fma_f32 v{b+1}, -v{b}, v{b}, v{b+1}
        v_max_f32 v{b+1}, 0, v{b+1}
        v_cvt_pk_bf16_f32 v{b}, v{b}, v{b+1}
        v_and_b32 v{b+1}, s17, v{b}
        v_lshlrev_b32 v{b}, 16, v{b}
        v_add_f32 v{b+1}, 0x3727c5ac, v{b+1}
        v_cvt_pk_bf16_f32 v{b+1}, v{b+1}, v{b+1}
        v_lshlrev_b32 v{b+1}, 16, v{b+1}
        v_sqrt_f32 v{b+1}, v{b+1}
        s_nop 0
        v_cvt_pk_bf16_f32 v{b+1}, v{b+1}, v{b+1}
        v_lshlrev_b32 v{b+1}, 16, v{b+1}
        v_rcp_f32 v{b+1}, v{b+1}
        """)
    for lb in range(2):
        b=32+4*lb; A=192+16*lb
        for r in range(0,16,2): a(f"v_pk_fma_f32 v[{A+r}:{A+r+1}], v[{b}:{b+1}], v[{224+r}:{225+r}], v[{A+r}:{A+r+1}] op_sel_hi:[0,1,1] neg_lo:[1,0,0] neg_hi:[1,0,0]")
        for r in range(0,16,2): a(f"v_pk_fma_f32 v[{A+r}:{A+r+1}], v[{A+r}:{A+r+1}], v[{b}:{b+1}], v[{240+r}:{241+r}] op_sel:[0,1,0] op_sel_hi:[1,1,1]")
        for r in range(16): a(f"v_max_f32 v{A+r}, 0, v{A+r}")
        for r in range(0,16,2): a(f"v_pk_mul_f32 v[{A+r}:{A+r+1}], v[{A+r}:{A+r+1}], v[{A+r}:{A+r+1}]")
        for r in range(8): a(f"v_cvt_pk_bf16_f32 v{64+16*lb+r}, v{A+2*r}, v{A+2*r+1}")
        for sp in range(2): a(f"buffer_store_dwordx4 v[{64+16*lb+4*sp}:{67+16*lb+4*sp}], v5, s[20:23], s27 offen offset:{1024*sp}")
        if lb==0: a(f"s_add_u32 s27, s27, {112*1024}")
    a.stamp(7)
    if FUSE:
        a(f"""
        v_mov_b32 v12, 1
        s_cmp_ge_u32 s18, 4
        s_cbranch_scc0 K3_F4
        s_waitcnt vmcnt(0)
        s_endpgm
        K3_F4:
        """)
        list(g4); a("K3_ST:")
    else:
        a("s_waitcnt vmcnt(0)") if STAMP else 0; a.stamp_end(2,8); a("s_endpgm\nK3_ST:")
    a("v_mov_b32 v12, 0x3f803f80")
    for i in range(8): a(f"v_mov_b32 v{16+i}, 0")
    def st(ks):
        S=24+8*(ks&3)
        for j in range(4):
            for lb in range(2):
                a(f"v_dot2c_f32_bf16 v{16+4*lb+2*(j&1)}, v{S+4*lb+j}, v12")
                a(f"v_dot2c_f32_bf16 v{17+4*lb+2*(j&1)}, v{S+4*lb+j}, v{S+4*lb+j}")
    loop(st, False)
    a(f"""
    v_lshlrev_b32 v12, 3, v1
    v_add_u32 v12, 0x10000, v12
    s_nop 2
    v_add_f32 v16, v16, v18
    v_add_f32 v17, v17, v19
    v_add_f32 v20, v20, v22
    v_add_f32 v21, v21, v23
    ds_write_b64 v12, v[16:17]
    ds_write_b64 v12, v[20:21] offset:512
    s_waitcnt lgkmcnt(0)
    s_barrier
    K3_END:
    s_endpgm
    """)
    return desc("k3_kernel",256)
def k4(a): return list(k4g(a))[-1]
def k4g(a):
    if not FUSE:
        a.begin("k4_kernel")
        a("s_cmp_ge_u32 s2, 256\n s_cbranch_scc1 K4_END"); a.stamp(0)
        a.srd(20,'ws',7340032,HID); a.srd(40,'ws',1835008,W2F); a.srd(44,'ws',49152,MODP); a.srd(4,'ws',512*X2S,X2T)
        a.srd(48,'b2',1024); a.srd(52,'out',2097152)
    wgmap(a)
    a.srd_fin()
    a(f"""
    v_mul_u32_u24 v3, {28*1024}, v2
    v_lshl_add_u32 v3, v1, 4, v3
    s_lshr_b32 s36, s18, 1
    s_and_b32 s37, s18, 1
    s_lshl_b32 s32, s3, 1
    s_add_u32 s32, s32, s36
    s_xor_b32 s33, s32, 1
    s_lshl_b32 s34, s16, 1
    s_add_u32 s34, s34, s37
    s_xor_b32 s35, s34, 1
    s_lshl_b32 s38, s3, 1
    s_add_u32 s38, s38, s16
    s_and_b32 s38, s38, {7*ROT4}
    s_mul_i32 s38, s38, 7
    s_lshr_b32 s38, s38, 1
    s_lshl_b32 s38, s38, 10
    """)
    for i in range(4): a(f"s_mul_i32 s{32+i}, s{32+i}, {112*1024}\n v_add_u32 v{28+i}, s{32+i}, v3")
    WIN=10
    Q=[]
    def ld(ks, which=range(4)):
        S=32+16*(ks%WIN)
        for i in which:
            a(f"buffer_load_dwordx4 v[{S+4*i}:{S+4*i+3}], v{28+i}, s[{20 if i<2 else 40}:{23 if i<2 else 43}], s38 offen"); Q.append(ks)
        a("s_add_u32 s38, s38, 1024")
    if FUSE:
        for ks in range(WIN): ld(ks,(2,3))
        yield 0
        a("s_waitcnt vmcnt(0)\n s_barrier\n s_cmp_lg_u32 s18, 0\n s_cbranch_scc1 K34_NF\n s_mov_b64 exec, 1\n buffer_store_dword v12, off, s[40:43], s30\n s_mov_b64 exec, -1\n K34_NF:")
        Q.clear()
        a(f"""
        s_lshl_b32 s28, s3, 9
        s_add_u32 s28, s28, {W2SZ}
        s_mov_b32 s38, 0
        s_mov_b32 s39, 0
        s_cmp_lg_u32 s18, 0
        s_cbranch_scc1 K34_GO
        v_lshlrev_b32 v5, 6, v1
        s_mov_b64 exec, 0xff
        K34_SPIN:
        buffer_load_dword v4, v5, s[40:43], s28 offen sc0 sc1
        s_add_u32 s39, s39, 1
        s_waitcnt vmcnt(0)
        v_cmp_eq_u32 vcc, 1, v4
        s_cmp_ge_u32 s39, 20000
        s_cbranch_scc1 K34_OUT
        s_cmp_lg_u32 vcc_lo, 0xff
        s_cbranch_scc1 K34_SPIN
        K34_OUT:
        s_mov_b64 exec, -1
        K34_GO:
        s_waitcnt vmcnt(0)
        s_barrier
        """); a.stamp(8)
        for ks in range(WIN): ld(ks,(0,1))
    else:
        for ks in range(WIN): ld(ks)
    a(f"""
    v_and_b32 v4, 31, v1
    v_lshrrev_b32 v5, 5, v1
    v_and_b32 v6, 1, v2
    v_lshl_add_u32 v4, v6, 5, v4
    s_lshl_b32 s36, s16, 6
    v_add_u32 v4, s36, v4
    v_lshrrev_b32 v6, 1, v2
    v_lshlrev_b32 v6, 5, v6
    v_lshl_add_u32 v6, v5, 2, v6
    s_lshl_b32 s36, s3, 6
    v_add_u32 v6, s36, v6
    v_mul_u32_u24 v7, {X2S}, v4
    v_lshl_add_u32 v7, v6, 1, v7
    v_and_b32 v8, 63, v6
    v_mul_u32_u24 v8, 144, v8
    v_and_b32 v9, 63, v4
    v_lshl_add_u32 v8, v9, 1, v8
    v_mul_u32_u24 v9, 96, v4
    v_lshlrev_b32 v10, 1, v4
    v_lshrrev_b32 v5, 3, v0
    v_and_b32 v6, 7, v0
    v_mul_u32_u24 v4, 144, v5
    v_lshl_add_u32 v4, v6, 4, v4
    v_lshlrev_b32 v5, 10, v5
    v_lshl_add_u32 v5, v6, 4, v5
    s_lshl_b32 s36, s3, 16
    s_lshl_b32 s37, s16, 7
    s_add_u32 s36, s36, s37
    s_add_u32 s37, s36, 0x8000
    v_lshlrev_b32 v11, 4, v1
    v_mul_u32_u24 v13, 12288, v2
    v_add_u32 v13, v13, v11
    v_xor_b32 v12, 1, v2
    v_mul_u32_u24 v12, 12288, v12
    v_add_u32 v12, v12, v11
    v_xor_b32 v14, 2, v2
    v_mul_u32_u24 v14, 12288, v14
    v_add_u32 v14, v14, v11
    v_xor_b32 v15, 3, v2
    v_mul_u32_u24 v15, 12288, v15
    v_add_u32 v15, v15, v11
    """)
    out=[4*WIN]; a.stamp(1) if not FUSE else 0
    for ks in range(28):
        S=32+16*(ks%WIN)
        if ks==27: Q.clear()
        while ks in Q: Q.pop(0)
        a(f"s_waitcnt vmcnt({len(Q)})")
        for lb in (1,0):
            for db in (1,0):
                q=2*lb+db; cc="0" if ks==0 else f"v[{192+16*q}:{207+16*q}]"
                a(f"v_mfma_f32_32x32x16_bf16 v[{192+16*q}:{207+16*q}], v[{S+4*lb}:{S+4*lb+3}], v[{S+8+4*db}:{S+11+4*db}], {cc}")
        if ks==0: a.stamp(2) if not FUSE else 0
        if ks==13: a.stamp(3) if not FUSE else 0
        if ks>=1 and ks-1+WIN<28: ld(ks-1+WIN)
        if ks==17:
            for g in range(4): a(f"buffer_load_dwordx2 v[{16+2*g}:{17+2*g}], v7, s[4:7], 0 offen offset:{16*g}")
            a("buffer_load_dwordx4 v[24:27], v9, s[44:47], 0 offen offset:80\n buffer_load_ushort v3, v10, s[48:51], 0 offen"); Q.extend([99]*6)
    a.stamp(4) if not FUSE else 0; a("s_nop 9")
    for q in (3,2,1):
        for g in range(4): a(f"ds_write_b128 v{[0,12,14,15][q]}, v[{192+16*q+4*g}:{195+16*q+4*g}] offset:{4096*(q-1)+1024*g}")
    a("""
    v_add_f32 v24, v24, v25
    v_add_f32 v26, v26, v27
    v_add_f32 v24, v24, v26
    v_cvt_pk_bf16_f32 v24, v24, v24
    v_lshlrev_b32 v24, 16, v24
    v_lshlrev_b32 v28, 16, v3
    """)
    for r in range(16): a(f"v_mov_b32 v{32+r}, v{192+r}")
    for i in range(8): a(f"v_lshlrev_b32 v{96+2*i}, 16, v{16+i}\n v_and_b32 v{97+2*i}, s17, v{16+i}")
    a("s_waitcnt lgkmcnt(0)\n s_barrier")
    for w in range(3):
        for g in range(4): a(f"ds_read_b128 v[{48+16*w+4*g}:{51+16*w+4*g}], v13 offset:{4096*w+1024*g}")
    for w in range(3):
        a(f"s_waitcnt lgkmcnt({8-4*w})")
        for r in range(0,16,2): a(f"v_pk_add_f32 v[{32+r}:{33+r}], v[{32+r}:{33+r}], v[{48+16*w+r}:{49+16*w+r}]")
    Y=list(range(32,48)); a.stamp(5) if not FUSE else 0
    rnd(a,Y)
    for r in range(0,16,2): a(f"v_pk_add_f32 v[{32+r}:{33+r}], v[{32+r}:{33+r}], v[28:29] op_sel_hi:[1,0]")
    rnd(a,Y)
    for r in range(0,16,2): a(f"v_pk_mul_f32 v[{32+r}:{33+r}], v[{32+r}:{33+r}], v[24:25] op_sel_hi:[1,0]")
    rnd(a,Y)
    for r in range(0,16,2): a(f"v_pk_add_f32 v[{32+r}:{33+r}], v[{32+r}:{33+r}], v[{96+r}:{97+r}]")
    for i in range(8): a(f"v_cvt_pk_bf16_f32 v{48+i}, v{32+2*i}, v{33+2*i}")
    for g in range(4):
        for r in range(4):
            a(f"ds_write_b16{'_d16_hi' if r&1 else ''} v8, v{48+2*g+r//2} offset:{49152+144*(8*g+r)}")
    a("s_waitcnt lgkmcnt(0)\n s_barrier")
    a(f"ds_read_b128 v[32:35], v4 offset:49152\n ds_read_b128 v[36:39], v4 offset:{49152+32*144}")
    a("s_waitcnt lgkmcnt(1)\n buffer_store_dwordx4 v[32:35], v5, s[52:55], s36 offen\n s_waitcnt lgkmcnt(0)\n buffer_store_dwordx4 v[36:39], v5, s[52:55], s37 offen")
    a.stamp(6) if not FUSE else 0; a("s_waitcnt vmcnt(0)") if STAMP else 0; a.stamp_end(2,9) if FUSE else a.stamp_end(3,7); a("K4_END:\n s_endpgm")
    yield desc("k4_kernel",256)
```
